```python
import torch

def _softmax(x, axis=-1):
    return torch.softmax(x, dim=axis)
def _gelu(x):
    return torch.nn.functional.gelu(x, approximate="tanh")
def _silu(x):
    return torch.nn.functional.silu(x)
def _sigmoid(x):
    return torch.sigmoid(x)
def _layernorm(x, axis=-1, eps=1e-5):
    m = x.mean(dim=axis, keepdim=True)
    v = x.var(dim=axis, keepdim=True, unbiased=False)
    return (x - m) / torch.sqrt(v + eps)
def _scatter_add(tgt, idx, src, axis=0):
    return tgt.clone().index_add_(axis, idx, src)
def _segment_sum(src, seg, n):
    out = torch.zeros((n,) + src.shape[1:], dtype=src.dtype)
    return out.index_add_(0, seg, src)
def _pad(x, pw):
    flat = tuple(v for pair in reversed(pw) for v in pair)
    return torch.nn.functional.pad(x, flat)

kernel_name = 'recurrent_scan__sliding_local_dilated__glu_gated_bilinear__prompt'

def setup_inputs():

    _w = (lambda a: (lambda t: t.to(torch.bfloat16) if t.is_floating_point() else t)(torch.as_tensor(a)))
    def _A_setup():
        B, S, D = 1, 2048, 448
        return {
            "x": _w((lambda *s: torch.randn(*s, dtype=torch.bfloat16) * 0.05)(B, S, D)),
            "wqkv": _w((lambda *s: torch.randn(*s, dtype=torch.bfloat16) * 0.2)(D, 3 * D)),
            "wo": _w((lambda *s: torch.randn(*s, dtype=torch.bfloat16) * 0.2)(D, D)),
        }
    _A_in = _A_setup()

    def _B_setup():
        B, S, D, F = 1, 2048, 448, 1792
        return {
            "x": _w((lambda *s: torch.randn(*s, dtype=torch.bfloat16) * 0.05)(B, S, D)),
            "w_gate": _w((lambda *s: torch.randn(*s, dtype=torch.bfloat16) * 0.1)(D, F) * (D ** -0.5)),
            "w_up": _w((lambda *s: torch.randn(*s, dtype=torch.bfloat16) * 0.1)(D, F) * (D ** -0.5)),
            "w_down": _w((lambda *s: torch.randn(*s, dtype=torch.bfloat16) * 0.1)(F, D) * (F ** -0.5)),
        }
    _B_in = _B_setup()

    return {
        "A_x": _A_in["x"],
        "A_wqkv": _A_in["wqkv"],
        "A_wo": _A_in["wo"],
        "B_x": _B_in["x"],
        "B_w_gate": _B_in["w_gate"],
        "B_w_up": _B_in["w_up"],
        "B_w_down": _B_in["w_down"],
    }

def reference(A_x, A_wqkv, A_wo, B_x, B_w_gate, B_w_up, B_w_down):
    def _A_ref(x, wqkv, wo):
        B, S, D = x.shape
        H = 16; Dh = D // H
        W, dil = 8, 2
        qkv = (lambda x, *d: x.permute(*d))((x @ wqkv).reshape(B, S, 3, H, Dh), 2, 0, 3, 1, 4)
        q, k, v = qkv[0], qkv[1], qkv[2]
        scale = Dh ** -0.5
        pos = torch.arange(S)
        off = torch.arange(W) * dil
        idx = pos[:, None] - off[None, :]
        mask = idx >= 0
        idx_c = torch.where(mask, idx, 0).reshape(-1)
        kg = k[:, :, idx_c, :].reshape(B, H, S, W, Dh)
        vg = v[:, :, idx_c, :].reshape(B, H, S, W, Dh)
        logits = torch.einsum("bhsd,bhswd->bhsw", q, kg) * scale
        logits = torch.where(mask[None, None, :, :], logits, -1e9)
        attn = _softmax(logits, axis=-1)
        o = torch.einsum("bhsw,bhswd->bhsd", attn, vg)
        return (lambda x, *d: x.permute(*d))(o, 0, 2, 1, 3).reshape(B, S, D) @ wo

    def _B_ref(x, w_gate, w_up, w_down):
        g = torch.einsum("bsd,df->bsf", x, w_gate)
        u = torch.einsum("bsd,df->bsf", x, w_up)
        h = g * u
        return torch.einsum("bsf,fd->bsd", h, w_down)

    x = A_x
    xn = _layernorm(x, axis=-1)
    s = _A_ref(xn, A_wqkv, A_wo)
    g = _silu(_B_ref(xn, B_w_gate, B_w_up, B_w_down))
    return x + s * g
```

```python
import sys, struct

OUT = "recurrent_scan__sliding_local_dilated__glu_gated_bilinear__prompt.s"

X_BYTES = 2048 * 896
WQKV_BYTES = 448 * 2688
WO_BYTES = 448 * 896
WG_BYTES = 448 * 3584
WD_BYTES = 1792 * 896
TILE_STRIDE = 72 * 1024
A2_BYTES = 128 * TILE_STRIDE
R2_OFF = A2_BYTES
OOB = 0x40000000
STAMP = False
FLAGS = set()
STAMP_OFF = 16 << 20

def hexf(x):
    return "0x%08x" % struct.unpack("<I", struct.pack("<f", x))[0]

class Asm:
    def __init__(self):
        self.L = []
        self.q = []
    def __call__(self, s):
        self.L.append("    " + s)
    def label(self, s):
        self.L.append(s + ":")
    def raw(self, s):
        self.L.append(s)
    def extend(self, lst):
        for s in lst:
            if s.endswith(":"): self.L.append(s)
            else: self(s)
    def lds(self, s, tag):
        self(s); self.q.append(tag)
    def need(self, *tags):
        idx = max((i for i, t in enumerate(self.q) if t in tags), default=-1)
        if idx < 0: return
        n = len(self.q) - 1 - idx
        n = min(n, 15)
        self(f"s_waitcnt lgkmcnt({n})")
        self.q = self.q[len(self.q) - n:] if n else []
    def drain(self):
        self("s_waitcnt lgkmcnt(0)"); self.q = []
    def vm_reset(self):
        self.vq = []
    def vm(self, s, tag):
        self(s); self.vq.append(tag)
    def vneed(self, *tags):
        idx = max((i for i, t in enumerate(self.vq) if t in tags), default=-1)
        if idx < 0: return
        n = min(len(self.vq) - 1 - idx, 63)
        self(f"s_waitcnt vmcnt({n})")
        self.vq = self.vq[len(self.vq) - n:] if n else []
    def estamp(self, k):
        if 'epi' in FLAGS: self.stamp(k, True)
    def stamp(self, k, force=False):
        if 'epi' in FLAGS and 1 <= k <= 4 and not force: return
        if STAMP:
            self(f"{'s_memtime' if 'cyc' in FLAGS else 's_memrealtime'} s[{80+2*k}:{81+2*k}]")
            self("s_waitcnt lgkmcnt(0)")
    def stamp_init(self):
        if STAMP:
            for k in range(8): self(f"s_mov_b64 s[{80+2*k}:{81+2*k}], 0")
            self("s_mov_b32 s97, s2")
            self.stamp(0)
    def stamp_out(self, kern, wsp, wave):
        if STAMP:
            self("s_waitcnt vmcnt(0)")
            self.stamp(7)
            self(f"s_lshl_b32 s96, s97, 3")
            self(f"s_add_u32 s96, s96, s{wave}")
            self(f"s_lshl_b32 s96, s96, 5")
            self(f"s_add_u32 s96, s96, {STAMP_OFF + kern*131072}")
            self(f"v_mov_b32 v0, s96")
            for k in range(8):
                self(f"v_mov_b32 v1, s{80+2*k}")
                self(f"global_store_dword v0, v1, s[{wsp}:{wsp+1}] offset:{4*k}")

def vr(b, n=1):
    return f"v{b}" if n == 1 else f"v[{b}:{b+n-1}]"

def srd(a, base, ptr, nbytes):
    a(f"s_mov_b32 s{base}, s{ptr}")
    a(f"s_mov_b32 s{base+1}, s{ptr+1}")
    a(f"s_mov_b32 s{base+2}, {nbytes}")
    a(f"s_mov_b32 s{base+3}, 0x00020000")

def bf16_round(a, dst, src):
    a(f"v_cvt_pk_bf16_f32 {dst}, {src}, {src}")
    a(f"v_and_b32 {dst}, 0xffff0000, {dst}")

def mfma(d, A, B, c=None):
    return f"v_mfma_f32_16x16x32_bf16 {vr(d,4)}, {vr(A,4)}, {vr(B,4)}, {vr(d,4) if c is None else c}"

def dma(voff, srd_, soff, off=0):
    return f"buffer_load_dwordx4 v{voff}, s[{srd_}:{srd_+3}], s{soff} offen" + (f" offset:{off}" if off else "") + " lds"

def pk_bcast(reg):
    return (vr(reg & ~1, 2), reg & 1)

S_W = 14
S_K0 = 15
SRD_X = 16
SRD_A = 20
SRD_B = 24
SRD_O = 28
S_HI = 32
S_H = 33
S_M15 = 34
S_M0L = 36
S_T = 40

def gen_k1(a):
    a.raw(".globl k1_kernel\n.p2align 8\n.type k1_kernel,@function")
    a.label("k1_kernel")
    a("s_cmp_ge_u32 s2, 256")
    a("s_cbranch_scc1 K1_EXIT")
    a.stamp_init()
    a("s_load_dwordx4 s[4:7], s[0:1], 0")
    a("s_load_dwordx4 s[8:11], s[0:1], 32")
    a("s_load_dwordx2 s[12:13], s[0:1], 72")
    a("s_load_dwordx2 s[68:69], s[0:1], 16")
    a("s_load_dwordx2 s[70:71], s[0:1], 48")
    a("s_mov_b32 s72, s2")
    a("v_lshrrev_b32 v1, 6, v0")
    a("v_and_b32 v0, 63, v0")
    a(f"v_readfirstlane_b32 s{S_W}, v1")
    a("s_and_b32 s3, s2, 7")
    a("s_lshr_b32 s2, s2, 3")
    a("s_cmp_eq_u32 s3, 7")
    a(f"s_cselect_b32 s{S_K0}, 0, s3")
    a("v_and_b32 v1, 15, v0")
    a("v_lshrrev_b32 v2, 4, v0")
    a(f"s_mov_b32 s{S_HI}, 0xffff0000")
    a(f"s_and_b32 s{S_H}, s{S_W}, 3")
    a("s_cmp_ge_u32 s2, 21")
    a("s_cbranch_scc1 K1_QKV")
    gen_glu(a)
    a.label("K1_QKV")
    gen_qkv(a)
    a.label("K1_EXIT")
    a("s_endpgm")

def helper_common(a):
    a("s_setprio 3")
    a("v_lshrrev_b32 v3, 3, v0")
    a("v_and_b32 v4, 7, v0")
    a(f"s_and_b32 s{S_T}, s{S_H}, 1")
    a(f"s_lshl_b32 s{S_T}, s{S_T}, 2")
    a(f"v_add_u32 v6, s{S_T}, v2")
    a("v_xor_b32 v6, v6, v4")
    a("v_lshlrev_b32 v6, 4, v6")
    a("v_mul_u32_u24 v5, 896, v3")
    a("v_add_u32 v5, v5, v6")

def compute_common(a):
    a(f"s_mov_b32 s{S_M15}, 0x80008000")
    a(f"s_mov_b32 s{S_M15+1}, 0x80008000")

PF_LDS = 157712
PF_A = 1
PF_T = 9
PF_B = 1
PF_CODE = 1
SRD_P = 76
def prefetch_w2(a, nreg, vtmp, vdst, track):
    a(f"s_cmp_lt_u32 s{nreg}, 196")
    a(f"s_cselect_b32 s{SRD_P}, s70, s68")
    a(f"s_cselect_b32 s{SRD_P+1}, s71, s69")
    a(f"s_mov_b32 s{S_T+1}, {WO_BYTES}")
    a(f"s_cselect_b32 s{SRD_P+2}, {WD_BYTES}, s{S_T+1}")
    a(f"s_cselect_b32 s{S_T+1}, 0, 196")
    a(f"s_mov_b32 s{SRD_P+3}, 0x00020000")
    a(f"s_sub_u32 s{S_T+1}, s{nreg}, s{S_T+1}")
    a(f"s_lshl_b32 s{S_T+1}, s{S_T+1}, 13")
    a(f"s_mov_b32 m0, {PF_LDS}")
    a(f"v_lshlrev_b32 v{vtmp}, 7, v0")
    ins = f"buffer_load_dword v{vtmp}, s[{SRD_P}:{SRD_P+3}], s{S_T+1} offen lds"
    if track: a.vm(ins, "pf")
    else: a(ins)

def prefetch_b(a, vtmp, vdst):
    if not PF_B: return
    for q in range(2):
        a(f"s_lshl_b32 s{S_T}, s2, 2")
        a(f"s_add_u32 s{S_T}, s{S_T}, s{S_H}")
        a(f"s_lshl_b32 s{S_T}, s{S_T}, 1")
        a(f"s_add_u32 s{S_T}, s{S_T}, {q}")
        prefetch_w2(a, S_T, vtmp, vdst + q, True)

def prefetch_a(a, vtmp, vdst, lab):
    a(f"s_cmp_lg_u32 s{S_W}, 0")
    a(f"s_cbranch_scc1 {lab}_C")
    if PF_A: prefetch_w2(a, 72, vtmp, vdst, False)
    a(f"s_branch {lab}_D")
    a.label(f"{lab}_C")
    if PF_CODE:
        a(f"s_getpc_b64 s[{SRD_P}:{SRD_P+1}]")
        a.label(f"{lab}_PC")
        a(f"s_sub_u32 s{SRD_P}, s{SRD_P}, {lab}_PC - k1_kernel")
        a(f"s_subb_u32 s{SRD_P+1}, s{SRD_P+1}, 0")
        a(f"s_mov_b32 s{SRD_P+2}, CODE_END - k1_kernel")
        a(f"s_mov_b32 s{SRD_P+3}, 0x00020000")
        a(f"s_sub_u32 s{S_T+1}, s{S_W}, 1")
        a(f"s_lshl_b32 s{S_T+1}, s{S_T+1}, 13")
        a(f"s_mov_b32 m0, {PF_LDS}")
        a(f"v_lshlrev_b32 v{vtmp}, 7, v0")
        a(f"buffer_load_dword v{vtmp}, s[{SRD_P}:{SRD_P+3}], s{S_T+1} offen lds")
    a.label(f"{lab}_D")

G_XSLOT = 176 * 128
G_WBASE = 3 * G_XSLOT
G_WSLOT = 16384
G_MEANS = G_WBASE + 5 * G_WSLOT
G_ONES = G_MEANS + 768
G_LDS = G_ONES + 16
G_TOK = 175

def gen_glu(a):
    S_CS, S_T0 = 48, 49
    a(f"s_mul_i32 s{S_T}, s3, 21")
    a(f"s_add_u32 s{S_T}, s{S_T}, s2")
    a(f"s_mul_i32 s{S_CS}, s{S_T}, 171")
    a(f"s_lshr_b32 s{S_CS}, s{S_CS}, 11")
    a(f"s_mul_i32 s{S_T+1}, s{S_CS}, 12")
    a(f"s_sub_u32 s{S_T}, s{S_T}, s{S_T+1}")
    a(f"s_mul_i32 s{S_T0}, s{S_T}, {G_TOK}")
    a(f"s_cmp_lt_u32 s{S_W}, 4")
    a("s_cbranch_scc1 G_COMPUTE")

    S_XB, S_XK, S_WK, S_HL = 50, 51, 52, 53
    V_XG, V_WG0, V_WG1 = 5, 6, 7
    V_RB = 8
    V_ONE = 12
    V_SD = 16
    V_SUM = 28
    helper_common(a)
    a(f"s_lshl_b32 s{S_HL}, s{S_H}, 10")
    a(f"s_lshl_b32 s{S_T}, s{S_H}, 3")
    a(f"s_add_u32 s{S_T}, s{S_T}, s{S_T0}")
    a(f"s_mul_i32 s{S_XB}, s{S_T}, 896")
    a(f"s_lshr_b32 s{S_T}, s{S_H}, 1")
    a(f"s_lshl_b32 s{S_T}, s{S_T}, 2")
    a(f"v_or_b32 v10, s{S_T}, v2")
    a("v_lshlrev_b32 v10, 1, v10")
    a("v_xor_b32 v10, v10, v1")
    a("v_lshlrev_b32 v10, 4, v10")
    a(f"s_lshl_b32 s{S_T}, s{S_H}, 2")
    a(f"v_add_u32 v11, s{S_T}, v2")
    a(f"v_mul_u32_u24 v{V_WG0}, 3584, v11")
    a(f"s_lshl_b32 s{S_T}, s{S_CS}, 8")
    a(f"v_add3_u32 v{V_WG0}, v{V_WG0}, v10, s{S_T}")
    a(f"v_add_u32 v{V_WG1}, {16*3584}, v{V_WG0}")
    a(f"s_lshl_b32 s{S_XK}, s{S_K0}, 7")
    a(f"s_mul_i32 s{S_WK}, s{S_K0}, {2*114688}")
    a("s_waitcnt lgkmcnt(0)")
    srd(a, SRD_X, 4, X_BYTES)
    srd(a, SRD_A, 8, WG_BYTES)
    srd(a, SRD_B, 10, WG_BYTES)
    a.vm_reset()
    def issue_x(S):
        base = (S % 3) * G_XSLOT
        lab = f"G_XSKIP{S}"
        a(f"s_add_u32 s{S_T+2}, s{S_XK}, s{S_XB}")
        a(f"s_cmp_ge_u32 s{S_H}, 2")
        a(f"s_cbranch_scc1 {lab}")
        a(f"s_add_u32 m0, s{S_HL}, {base + 4096*5}")
        a(f"s_add_u32 s{S_T+3}, s{S_T+2}, {5*32*896}")
        a(dma(V_XG, SRD_X, S_T+3))
        a.label(lab)
        for j in range(5):
            a(f"s_add_u32 m0, s{S_HL}, {base + 4096*j}")
            a(f"s_add_u32 s{S_T+3}, s{S_T+2}, {j*32*896}")
            a.vm(dma(V_XG, SRD_X, S_T+3), ("X", S))
        a(f"s_add_u32 s{S_XK}, s{S_XK}, 128")
        a(f"s_cmp_ge_u32 s{S_XK}, 896")
        a(f"s_cselect_b32 s{S_XK}, 0, s{S_XK}")
    def issue_w(t):
        base = G_WBASE + (t % 5) * G_WSLOT
        for q, (v, sd) in enumerate(((V_WG0, SRD_A), (V_WG1, SRD_A), (V_WG0, SRD_B), (V_WG1, SRD_B))):
            a(f"s_add_u32 m0, s{S_HL}, {base + 4096*q}")
            a("s_nop 0")
            a.vm(dma(v, sd, S_WK), ("W", t))
        a(f"s_add_u32 s{S_WK}, s{S_WK}, 114688")
        if t & 1:
            a(f"s_cmp_ge_u32 s{S_WK}, {14*114688}")
            a(f"s_cselect_b32 s{S_WK}, 0, s{S_WK}")
    a.stamp(1)
    issue_x(0); issue_w(0); issue_w(1); issue_w(2)
    a("v_lshrrev_b32 v10, 1, v1")
    a("v_xor_b32 v10, v10, v2")
    a("v_lshlrev_b32 v10, 4, v10")
    a("v_lshl_add_u32 v10, v1, 7, v10")
    a(f"s_lshl_b32 s{S_T}, s{S_H}, 11")
    a(f"v_add_u32 v{V_RB}, s{S_T}, v10")
    a(f"v_xor_b32 v{V_RB+1}, 64, v{V_RB}")
    for r in range(4): a(f"v_mov_b32 v{V_ONE+r}, 0x3f803f80")
    for r in range(0, 12, 2): a(f"v_mov_b64 {vr(V_SUM+r,2)}, 0")
    a.stamp(2)
    plan = {-1: ["X1"], 0: ["W3", "X2"], 1: ["W4", "W5"], 2: ["X3", "W6"], 3: ["W7", "W8"]}
    for t in range(4, 9):
        plan[t] = ([f"X{t//2+2}"] if t % 2 == 0 else []) + [f"W{t+5}"]
    for t in range(-1, 13):
        a.vneed(("W", t + 1), ("X", (t + 1) // 2))
        a("s_barrier")
        if t == -1: a.stamp(3)
        S, ks = (t + 1) // 2, (t + 1) % 2
        for n in range(3):
            a(f"ds_read_b128 {vr(V_SD+4*n,4)}, v{V_RB+ks} offset:{(S%3)*G_XSLOT + 8192*n}")
        for it in plan.get(t, []):
            issue_x(int(it[1:])) if it[0] == "X" else issue_w(int(it[1:]))
        if t == PF_T: prefetch_b(a, 10, 40)
        a("s_waitcnt lgkmcnt(0)")
        for n in range(3):
            a(mfma(V_SUM + 4 * n, V_ONE, V_SD + 4 * n))
    a(f"s_lshl_b32 s{S_T}, s{S_H}, 6")
    a(f"s_add_u32 s{S_T}, s{S_T}, {G_MEANS}")
    a(f"v_lshl_add_u32 v10, v1, 2, s{S_T}")
    a("s_nop 5")
    for n in range(3):
        a(f"v_mul_f32 v{V_SD+n}, {hexf(-1.0/448)}, v{V_SUM+4*n}")
        bf16_round(a, f"v{V_SD+n}", f"v{V_SD+n}")
        a(f"ds_write_b32 v10, v{V_SD+n} offset:{256*n}")
    a("s_waitcnt lgkmcnt(0)")
    a.stamp(5)
    a("s_barrier")
    a.stamp_out(0, 12, S_W)
    a("s_endpgm")

    a.label("G_COMPUTE")
    S_XR, S_WR, S_IT = 50, 51, 52
    V_XB = 3
    V_WB = 5
    V_ONES = 7
    V_XA = 8
    V_XL = 10
    V_WA = 11
    V_SO, V_SOL = 13, 14
    V_T = 16
    V_XF = 24
    V_WF = 48
    V_ACC = 80
    def acc(j, f): return V_ACC + (j * 4 + f) * 4
    def xf(j): return V_XF + (j % 6) * 4
    def wf(b, f): return V_WF + b * 16 + f * 4
    compute_common(a)
    a("v_lshrrev_b32 v16, 1, v1")
    a("v_xor_b32 v16, v16, v2")
    a("v_lshlrev_b32 v16, 4, v16")
    a(f"v_lshl_add_u32 v{V_XB}, v1, 7, v16")
    a(f"v_xor_b32 v{V_XB+1}, 64, v{V_XB}")
    a("v_bfe_u32 v16, v0, 2, 2")
    a("v_and_b32 v17, 1, v2")
    a("v_lshl_or_b32 v17, v17, 2, v16")
    a(f"s_lshl_b32 s{S_T}, s{S_H}, 1")
    a(f"v_xor_b32 v17, s{S_T}, v17")
    a("v_lshlrev_b32 v17, 5, v17")
    a("v_lshl_add_u32 v16, v2, 3, v16")
    a("v_lshl_add_u32 v17, v16, 8, v17")
    a("v_and_b32 v16, 3, v0")
    a(f"v_lshl_add_u32 v{V_WB}, v16, 3, v17")
    a(f"v_xor_b32 v{V_WB+1}, 32, v{V_WB}")
    a(f"v_mov_b32 v{V_ONES}, {G_ONES - 10*2048}")
    a("v_mov_b32 v16, 0x3f803f80")
    a("v_mov_b32 v17, 0x3f803f80")
    a(f"v_mov_b32 v18, {G_ONES}")
    a("ds_write_b64 v18, v[16:17]")
    a("ds_write_b64 v18, v[16:17] offset:8")
    for r in range(0, 176, 2): a(f"v_mov_b64 {vr(V_ACC+r,2)}, 0")
    a(f"v_add_u32 v16, s{S_T0}, v1")
    a("v_lshrrev_b32 v17, 4, v16")
    a(f"s_mov_b32 s{S_T+1}, {TILE_STRIDE}")
    a(f"v_mul_lo_u32 v17, v17, s{S_T+1}")
    a("v_and_b32 v16, 15, v16")
    a("v_lshl_add_u32 v16, v2, 4, v16")
    a("v_lshl_add_u32 v17, v16, 4, v17")
    a(f"s_lshl_b32 s{S_T}, s{S_CS}, 2")
    a(f"s_add_u32 s{S_T}, s{S_T}, s{S_H}")
    a(f"s_lshl_b32 s{S_T}, s{S_T}, 10")
    a(f"v_add_u32 v{V_SO}, s{S_T}, v17")
    a(f"v_mov_b32 v16, {OOB}")
    a(f"v_cndmask_b32 v{V_SOL}, v{V_SO}, v16, s[{S_M15}:{S_M15+1}]")
    a(f"s_mov_b32 s{S_XR}, 0")
    a(f"s_mov_b32 s{S_WR}, {G_WBASE}")
    a(f"s_mov_b32 s{S_IT}, 0")
    a(f"v_mov_b32 v{V_XA}, v{V_XB}")
    a(f"v_add_u32 v{V_WA}, s{S_WR}, v{V_WB}")
    a(f"v_add_u32 v{V_WA+1}, s{S_WR}, v{V_WB+1}")
    a("s_waitcnt lgkmcnt(0)")
    srd(a, SRD_O, 12, A2_BYTES)
    prefetch_a(a, 16, 17, "G_PFA")
    def wread(b, k):
        f, hf = k >> 1, k & 1
        return f"ds_read_b64_tr_b16 {vr(wf(b,f)+2*hf,2)}, v{V_WA+(f&1)} offset:{8192*(f>>1)+1024*hf}"
    def xread(j, base):
        return f"ds_read_b128 {vr(xf(j),4)}, v{base} offset:{2048*j}"
    a.stamp(2)
    a("s_barrier")
    a.stamp(3)
    for k in range(8): a(wread(0, k))
    for j in range(6): a(xread(j, V_XA))
    a.drain()
    a.stamp(4)
    a.label("G_LOOP")
    a.q = [("x", 0, j) for j in (2, 3, 4)]
    for p in range(2):
        a("s_barrier")
        for j in range(11):
            a.need(("x", p, j))
            for f in range(4):
                a(mfma(acc(j, f), wf(p, f), xf(j)))
                if j == 0 and f == 0:
                    a(f"s_add_u32 s{S_WR}, s{S_WR}, {G_WSLOT}")
                    a(f"s_cmp_ge_u32 s{S_WR}, {G_WBASE+5*G_WSLOT}")
                if j == 0 and f == 1:
                    a(f"s_cselect_b32 s{S_WR}, {G_WBASE}, s{S_WR}")
                    a(f"v_add_u32 v{V_WA}, s{S_WR}, v{V_WB}")
                if j == 0 and f == 2:
                    a(f"v_add_u32 v{V_WA+1}, s{S_WR}, v{V_WB+1}")
                    a(f"v_cndmask_b32 v{V_XL}, v{V_XA+p}, v{V_ONES}, s[{S_M15}:{S_M15+1}]")
                if j == 2 and p == 1 and f == 0:
                    a(f"s_add_u32 s{S_XR}, s{S_XR}, {G_XSLOT}")
                    a(f"s_cmp_ge_u32 s{S_XR}, {3*G_XSLOT}")
                if j == 2 and p == 1 and f == 2:
                    a(f"s_cselect_b32 s{S_XR}, 0, s{S_XR}")
                if j == 3 and f == 0:
                    a(f"v_add_u32 v{V_XA+(p^1)}, s{S_XR}, v{V_XB+(p^1)}")
                if 1 <= j <= 8 and f == 1:
                    a.lds(wread(p ^ 1, j - 1), ("w", p ^ 1, j - 1))
                if j == 10 and p == 1 and f == 0:
                    a(f"s_add_u32 s{S_IT}, s{S_IT}, 1")
                    a(f"s_cmp_lt_u32 s{S_IT}, 7")
            if j <= 4:
                a.lds(xread(j + 6, V_XL if j + 6 == 10 else V_XA + p), ("x", p, j + 6))
            elif j == 5:
                a.lds(xread(5, V_XA + (p ^ 1)), ("x", p ^ 1, 5))
            else:
                a.lds(xread(j - 6, V_XA + (p ^ 1)), ("x", p ^ 1, j - 6))
        a.need(("w", p ^ 1, 7))
    assert a.q == [("x", 0, j) for j in (2, 3, 4)], a.q
    a("s_cbranch_scc1 G_LOOP")
    a.stamp(5)
    NM = V_XF
    OUTR = V_XF + 12
    CS = V_WF
    a(f"v_lshlrev_b32 v16, 2, v1")
    a(f"v_add_u32 v16, {G_MEANS}, v16")
    a.drain()
    for j in range(11):
        a(f"ds_read_b32 v{NM+j}, v16 offset:{64*j}")
    for r in range(16):
        a(f"v_mov_b32_dpp v{CS+r}, v{acc(10,0)+r} row_newbcast:15 row_mask:0xf bank_mask:0xf")
    a("s_waitcnt lgkmcnt(0)")
    for j in range(11):
        o = OUTR + 4 * (j & 1)
        nm, sel = pk_bcast(NM + j)
        for r in range(0, 16, 2):
            d = acc(j, 0) + r
            a(f"v_pk_fma_f32 {vr(d,2)}, {vr(CS+r,2)}, {nm}, {vr(d,2)} op_sel:[0,{sel},0] op_sel_hi:[1,{sel},1]")
        for r in range(0, 8, 2):
            d = acc(j, 0) + r
            a(f"v_pk_mul_f32 {vr(d,2)}, {vr(d,2)}, {vr(d+8,2)}")
        for q in range(4):
            a(f"v_cvt_pk_bf16_f32 v{o+q}, v{acc(j,0)+2*q}, v{acc(j,0)+2*q+1}")
        a(f"s_mov_b32 s{S_T}, {TILE_STRIDE*j}")
        a(f"buffer_store_dwordx4 {vr(o,4)}, v{V_SOL if j==10 else V_SO}, s[{SRD_O}:{SRD_O+3}], s{S_T} offen")
    a.stamp(6)
    a.stamp_out(0, 12, S_W)
    a("s_endpgm")

Q_XB = 208 * 128
Q_SLOT = Q_XB + 24576
Q_STAT = 3 * Q_SLOT
Q_ONES = Q_STAT + 2048
Q_SCR = Q_ONES + 16
Q_LDS = Q_SCR + 2048
Q_VA = 2 * 208 * 64
Q_TOK = 190

def gen_qkv(a):
    S_HP, S_T0, S_QB = 48, 49, 50
    a(f"s_mov_b32 s{S_HP}, s3")
    a(f"s_sub_u32 s{S_QB}, s2, 21")
    a(f"s_mul_i32 s{S_T0}, s{S_QB}, {Q_TOK}")
    a(f"s_cmp_lt_u32 s{S_W}, 4")
    a("s_cbranch_scc1 Q_COMPUTE")

    S_XB0, S_XB, S_XB3 = 51, 52, 53
    S_XK, S_WK, S_HL = 54, 55, 56
    V_XG, V_WG = 5, 6
    V_RB = 8
    V_RA = 16
    V_SL = 24
    V_TMP = 26
    V_SD = 32
    V_GR = 64
    helper_common(a)
    a(f"s_mov_b32 s{S_M15}, 0x80008000")
    a(f"s_mov_b32 s{S_M15+1}, 0x80008000")
    a(f"s_lshl_b32 s{S_HL}, s{S_H}, 10")
    a(f"s_lshl_b32 s{S_T}, s{S_H}, 3")
    a(f"s_add_u32 s{S_T}, s{S_T}, s{S_T0}")
    a(f"s_sub_i32 s{S_T}, s{S_T}, 16")
    a(f"s_mul_i32 s{S_XB}, s{S_T}, 896")
    a(f"s_cmp_lt_i32 s{S_T}, 0")
    a(f"s_cselect_b32 s{S_XB0}, {OOB}, s{S_XB}")
    a(f"s_lshr_b32 s{S_T+1}, s{S_H}, 1")
    a(f"s_mul_i32 s{S_T+1}, s{S_T+1}, 896")
    a(f"s_sub_u32 s{S_XB3}, s{S_XB}, s{S_T+1}")
    a(f"s_add_u32 s{S_XB3}, s{S_XB3}, {3*32*896}")
    a("v_and_b32 v10, 1, v2")
    a(f"s_and_b32 s{S_T}, s{S_H}, 1")
    a(f"s_lshl_b32 s{S_T}, s{S_T}, 1")
    a(f"v_or_b32 v10, s{S_T}, v10")
    a("v_lshlrev_b32 v10, 1, v10")
    a("v_xor_b32 v10, v10, v4")
    a(f"s_lshl_b32 s{S_T}, s{S_H}, 3")
    a(f"v_add_u32 v11, s{S_T}, v3")
    a(f"v_mul_u32_u24 v11, 2688, v11")
    a(f"s_mul_i32 s{S_T}, s{S_HP}, 112")
    a(f"v_lshl_add_u32 v11, v10, 4, v11")
    a(f"v_add_u32 v11, s{S_T}, v11")
    a("v_cmp_eq_u32 vcc, 7, v10")
    a(f"v_mov_b32 v12, {OOB}")
    a(f"s_lshl_b32 s{S_XK}, s{S_K0}, 7")
    a(f"s_mul_i32 s{S_WK}, s{S_K0}, {64*2688}")
    a(f"v_cndmask_b32 v{V_WG}, v11, v12, vcc")
    a("s_waitcnt lgkmcnt(0)")
    srd(a, SRD_X, 4, X_BYTES)
    srd(a, SRD_A, 6, WQKV_BYTES)
    a.vm_reset()
    def issue_x(S):
        base = (S % 3) * Q_SLOT
        lab = f"Q_XSKIP{S}"
        a(f"s_add_u32 s{S_T+5}, s{S_XK}, s{S_XB}")
        a(f"s_cmp_ge_u32 s{S_H}, 2")
        a(f"s_cbranch_scc1 {lab}")
        a(f"s_add_u32 m0, s{S_HL}, {base + 4096*6}")
        a(f"s_add_u32 s{S_T+3}, s{S_T+5}, {(6*32-1)*896}")
        a(dma(V_XG, SRD_X, S_T+3))
        a.label(lab)
        for j in range(6):
            a(f"s_add_u32 m0, s{S_HL}, {base + 4096*j}")
            if j == 0: a(f"s_add_u32 s{S_T+3}, s{S_XK}, s{S_XB0}")
            elif j == 3: a(f"s_add_u32 s{S_T+3}, s{S_XK}, s{S_XB3}")
            else: a(f"s_add_u32 s{S_T+3}, s{S_T+5}, {(j*32-(1 if j>=4 else 0))*896}")
            a.vm(dma(V_XG, SRD_X, S_T+3), ("X", S))
        a(f"s_add_u32 s{S_XK}, s{S_XK}, 128")
        a(f"s_cmp_ge_u32 s{S_XK}, 896")
        a(f"s_cselect_b32 s{S_XK}, 0, s{S_XK}")
    def issue_w(S):
        base = (S % 3) * Q_SLOT
        for q in range(6):
            a(f"s_add_u32 m0, s{S_HL}, {base + Q_XB + 4096*q}")
            a(f"s_add_u32 s{S_T+3}, s{S_WK}, {(q//3)*32*2688 + (q%3)*896}")
            a.vm(dma(V_WG, SRD_A, S_T+3), ("W", S))
        a(f"s_add_u32 s{S_WK}, s{S_WK}, {64*2688}")
        a(f"s_cmp_ge_u32 s{S_WK}, {448*2688}")
        a(f"s_cselect_b32 s{S_WK}, 0, s{S_WK}")
    a.stamp(1)
    issue_x(0); issue_w(0); issue_x(1)
    a(f"s_mul_i32 s{S_T}, s{S_H}, 15")
    a(f"v_mov_b32 v{V_TMP+2}, {Q_ONES}")
    for n in range(4):
        a(f"s_add_u32 s{S_T+1}, s{S_T}, {60*n}")
        a(f"v_add_u32 v{V_TMP}, s{S_T+1}, v1")
        a(f"v_bfe_u32 v{V_TMP+1}, v{V_TMP}, 1, 3")
        a(f"v_xor_b32 v{V_TMP+1}, v{V_TMP+1}, v2")
        a(f"v_lshlrev_b32 v{V_TMP+1}, 4, v{V_TMP+1}")
        a(f"v_lshl_add_u32 v{V_TMP}, v{V_TMP}, 7, v{V_TMP+1}")
        a(f"v_xor_b32 v{V_TMP+1}, 64, v{V_TMP}")
        a(f"v_cndmask_b32 v{V_RB+2*n}, v{V_TMP}, v{V_TMP+2}, s[{S_M15}:{S_M15+1}]")
        a(f"v_cndmask_b32 v{V_RB+2*n+1}, v{V_TMP+1}, v{V_TMP+2}, s[{S_M15}:{S_M15+1}]")
    a(f"v_mov_b32 v{V_TMP}, {Q_SLOT}")
    a(f"v_cndmask_b32 v{V_SL}, v{V_TMP}, 0, s[{S_M15}:{S_M15+1}]")
    for r in range(0, 16, 2): a(f"v_mov_b64 {vr(V_GR+r,2)}, 0")
    a.stamp(2)
    plan = {0: ["W1", "X2"], 1: ["W2", "X3", "W3"]}
    for S in range(2, 5): plan[S] = [f"X{S+2}", f"W{S+2}"]
    for S in range(7):
        if S % 3 == 0: ra = V_RB
        else:
            src = V_RB if S % 3 == 1 else V_RA
            for r in range(8): a(f"v_add_u32 v{V_RA+r}, v{V_SL}, v{src+r}")
            ra = V_RA
        a.vneed(("W", S), ("X", S))
        a("s_barrier")
        for r in range(8):
            a(f"ds_read_b128 {vr(V_SD+4*r,4)}, v{ra+r}")
        for it in plan.get(S, []):
            issue_x(int(it[1:])) if it[0] == "X" else issue_w(int(it[1:]))
        if S == (PF_T + 1) // 2: prefetch_b(a, V_TMP, 80)
        a("s_waitcnt lgkmcnt(0)")
        for r in (0, 2, 4, 6, 1, 3, 5, 7):
            a(mfma(V_GR + 4 * (r >> 1), V_SD + 4 * r, V_SD + 4 * r))
    def lm(fn):
        m = 0
        for l in range(64):
            if fn(l & 15, l >> 4): m |= 1 << l
        return m
    def smask(reg, m):
        a(f"s_mov_b32 s{reg}, {m & 0xffffffff:#x}")
        a(f"s_mov_b32 s{reg+1}, {m >> 32:#x}")
    smask(60, lm(lambda i, g: (i & 1) == 1))
    smask(62, lm(lambda i, g: (i & 2) == 2))
    smask(64, lm(lambda i, g: g == (i >> 2)))
    smask(66, lm(lambda i, g: g == 3))
    a(f"s_lshl_b32 s{S_T}, s{S_H}, 9")
    a(f"s_add_u32 s{S_T}, s{S_T}, {Q_SCR}")
    a(f"v_lshl_add_u32 v{V_TMP}, v1, 3, s{S_T}")
    a(f"v_lshl_add_u32 v{V_TMP+1}, v0, 3, s{S_T}")
    for n in range(4):
        g0 = V_GR + 4 * n
        a(f"v_cndmask_b32 v{V_SD+2*n}, v{g0}, v{g0+1}, s[60:61]")
        a(f"v_cndmask_b32 v{V_SD+2*n+1}, v{g0+2}, v{g0+3}, s[60:61]")
        a(f"v_cndmask_b32 v{V_SD+2*n}, v{V_SD+2*n}, v{V_SD+2*n+1}, s[62:63]")
    a("s_mov_b64 exec, s[64:65]")
    for n in range(4): a(f"ds_write_b32 v{V_TMP}, v{V_SD+2*n} offset:{128*n+4}")
    a("s_mov_b64 exec, s[66:67]")
    for n in range(4): a(f"ds_write_b32 v{V_TMP}, v{V_GR+4*n+3} offset:{128*n}")
    a("s_mov_b64 exec, -1")
    SU, SQ = V_TMP + 2, V_TMP + 3
    a("s_waitcnt lgkmcnt(0)")
    a(f"ds_read_b64 {vr(SU,2)}, v{V_TMP+1}")
    a(f"s_mul_i32 s{S_T}, s{S_H}, 15")
    a(f"v_mul_u32_u24 v{V_TMP}, 60, v2")
    a(f"v_add3_u32 v{V_TMP}, v{V_TMP}, v1, s{S_T}")
    a(f"v_mov_b32 v{V_TMP+4}, 255")
    a(f"v_cndmask_b32 v{V_TMP}, v{V_TMP}, v{V_TMP+4}, s[{S_M15}:{S_M15+1}]")
    a(f"v_lshlrev_b32 v{V_TMP}, 3, v{V_TMP}")
    a(f"v_add_u32 v{V_TMP}, {Q_STAT}, v{V_TMP}")
    a(f"s_mov_b32 s{S_T+1}, {hexf(1.0/448)}")
    a("s_waitcnt lgkmcnt(0)")
    a(f"v_mul_f32 v{SU}, {hexf(-1.0/448)}, v{SU}")
    a(f"v_mul_f32 v{V_TMP+4}, v{SU}, v{SU}")
    a(f"v_fma_f32 v{SQ}, v{SQ}, s{S_T+1}, -v{V_TMP+4}")
    a(f"v_max_f32 v{SQ}, 0, v{SQ}")
    bf16_round(a, f"v{SU}", f"v{SU}")
    bf16_round(a, f"v{SQ}", f"v{SQ}")
    a(f"v_add_f32 v{SQ}, {hexf(1e-5)}, v{SQ}")
    bf16_round(a, f"v{SQ}", f"v{SQ}")
    a(f"v_sqrt_f32 v{SQ}, v{SQ}")
    a("s_nop 0")
    bf16_round(a, f"v{SQ}", f"v{SQ}")
    a(f"v_rcp_f32 v{SQ}, v{SQ}")
    a("s_nop 0")
    a(f"ds_write_b64 v{V_TMP}, {vr(SU,2)}")
    a("s_waitcnt lgkmcnt(0)")
    a.stamp(5)
    a("s_barrier")
    a.stamp_out(0, 12, S_W)
    a("s_endpgm")

    a.label("Q_COMPUTE")
    S_HD, S_TH = 51, 52
    S_R, S_IT = 53, 54
    S_PAR, S_C0, S_C1, S_SC, S_L2E = 56, 58, 60, 62, 64
    PFV = 28
    KST, VST = 80, 72
    V_XB = 3
    V_HB = 5
    V_WB = 7
    V_ONES5, V_ONES0 = 9, 10
    V_XA, V_XL, V_XH = 11, 12, 13
    V_WA = 14
    V_XF = 28
    V_WF = 56
    V_ACC = 104
    def acc(j, f): return V_ACC + (j * 6 + f) * 4
    ACCH = V_ACC + 144
    def xf(j): return V_XF + 4 * j
    def wf(b, f): return V_WF + b * 24 + f * 4
    compute_common(a)
    a(f"s_mov_b32 s{S_M0L}, 0x00010001")
    a(f"s_mov_b32 s{S_M0L+1}, 0x00010001")
    a(f"s_lshr_b32 s{S_HD}, s{S_H}, 1")
    a(f"s_and_b32 s{S_TH}, s{S_H}, 1")
    a("v_lshrrev_b32 v16, 1, v1")
    a("v_xor_b32 v16, v16, v2")
    a("v_lshlrev_b32 v16, 4, v16")
    a(f"v_lshl_add_u32 v{V_HB}, v1, 7, v16")
    a(f"v_xor_b32 v{V_HB+1}, 64, v{V_HB}")
    a(f"s_mul_i32 s{S_T}, s{S_TH}, {96*128}")
    a(f"s_add_u32 s{S_T}, s{S_T}, 2048")
    a(f"v_add_u32 v{V_XB}, s{S_T}, v{V_HB}")
    a(f"v_add_u32 v{V_XB+1}, s{S_T}, v{V_HB+1}")
    a("v_bfe_u32 v16, v0, 2, 2")
    a("v_lshl_add_u32 v17, v2, 3, v16")
    a("v_lshlrev_b32 v17, 7, v17")
    a(f"v_add_u32 v17, {Q_XB}, v17")
    a("v_bfe_u32 v18, v0, 3, 2")
    a("v_lshlrev_b32 v18, 5, v18")
    a("v_and_b32 v19, 3, v0")
    a("v_cmp_eq_u32 vcc, 3, v19")
    a(f"s_mul_i32 s{S_T}, s{S_HD}, 56")
    a(f"v_lshl_add_u32 v19, v19, 3, s{S_T}")
    a("v_xor_b32 v16, v19, v18")
    a("v_add_u32 v20, v16, v17")
    a("v_add_u32 v19, 32, v19")
    a("v_mov_b32 v16, 112")
    a("v_cndmask_b32 v19, v19, v16, vcc")
    a("v_xor_b32 v16, v19, v18")
    a("v_add_u32 v21, v16, v17")
    a(f"s_cmp_eq_u32 s{S_TH}, 0")
    a("s_cselect_b64 vcc, -1, 0")
    a(f"v_cndmask_b32 v{V_WB}, v21, v20, vcc")
    a(f"v_cndmask_b32 v{V_WB+1}, v20, v21, vcc")
    a(f"v_mov_b32 v{V_ONES5}, {Q_ONES - 5*2048}")
    a(f"v_mov_b32 v{V_ONES0}, {Q_ONES}")
    a("v_mov_b32 v16, 0x3f803f80")
    a("v_mov_b32 v17, 0x3f803f80")
    a(f"ds_write_b64 v{V_ONES0}, v[16:17]")
    a(f"ds_write_b64 v{V_ONES0}, v[16:17] offset:8")
    for r in range(0, 152, 2): a(f"v_mov_b64 {vr(V_ACC+r,2)}, 0")
    a(f"s_mov_b32 s{S_PAR}, 0xaaaaaaaa")
    a(f"s_mov_b32 s{S_PAR+1}, 0xaaaaaaaa")
    a(f"s_mov_b32 s{S_SC}, {hexf(28 ** -0.5)}")
    a(f"s_mov_b32 s{S_SC+1}, {hexf(28 ** -0.5)}")
    a(f"s_mov_b32 s{S_L2E}, {hexf(1.4426950408889634)}")
    a(f"s_mov_b32 s{S_L2E+1}, {hexf(1.4426950408889634)}")
    def lanemask(fn):
        m = 0
        for l in range(64):
            if fn(l & 15, l >> 4): m |= 1 << l
        return m
    c0 = lanemask(lambda i, g: 4 * g + (i & 1) <= i)
    c1 = lanemask(lambda i, g: 4 * g + 2 + (i & 1) <= i)
    a(f"s_mov_b32 s{S_C0}, {c0 & 0xffffffff:#x}")
    a(f"s_mov_b32 s{S_C0+1}, {c0 >> 32:#x}")
    a(f"s_mov_b32 s{S_C1}, {c1 & 0xffffffff:#x}")
    a(f"s_mov_b32 s{S_C1+1}, {c1 >> 32:#x}")
    V_KW4, V_KW5, V_VW0, V_VW1, V_VL0, V_VL1, V_KR, V_VR, V_SO, V_SOL, V_R2, V_R2L = range(16, 28)
    T0_, T1_, T2_ = V_XF, V_XF + 1, V_XF + 2
    S_KH, S_VH = S_T + 6, S_T + 7
    a(f"s_mul_i32 s{S_KH}, s{S_HD}, {208*KST}")
    a(f"s_mul_i32 s{S_VH}, s{S_HD}, {208*VST}")
    a(f"s_add_u32 s{S_VH}, s{S_VH}, {2*208*KST}")
    a("s_waitcnt lgkmcnt(0)")
    a(f"v_mul_u32_u24 v{T0_}, {KST}, v1")
    a(f"v_lshl_add_u32 v{T0_}, v2, 4, v{T0_}")
    a(f"s_mul_i32 s{S_T}, s{S_TH}, {95*KST}")
    a(f"s_add_u32 s{S_T}, s{S_T}, s{S_KH}")
    a(f"v_add_u32 v{V_KR}, s{S_T}, v{T0_}")
    a(f"v_add_u32 v{V_KW4}, {80*KST}, v{V_KR}")
    a(f"v_add_u32 v{V_KW5}, {96*KST}, v{V_KR}")
    a(f"s_add_u32 s{S_T+2}, s{S_KH}, {206*KST}")
    a(f"v_lshl_add_u32 v{T2_}, v2, 4, s{S_T+2}")
    a(f"v_cndmask_b32 v{V_KW5}, v{V_KW5}, v{T2_}, s[{S_M15}:{S_M15+1}]")
    a(f"v_mul_u32_u24 v{T0_}, {VST}, v1")
    a(f"v_lshl_add_u32 v{T0_}, v2, 3, v{T0_}")
    a(f"s_mul_i32 s{S_T}, s{S_TH}, {95*VST}")
    a(f"s_add_u32 s{S_T}, s{S_T}, s{S_VH}")
    a(f"s_lshl_b32 s{S_T+1}, s{S_TH}, 5")
    a(f"s_add_u32 s{S_T+2}, s{S_T}, {16*VST}")
    a(f"s_add_u32 s{S_T+3}, s{S_T+2}, s{S_T+1}")
    a(f"v_add_u32 v{V_VW0}, s{S_T+3}, v{T0_}")
    a(f"s_sub_u32 s{S_T+3}, s{S_T+2}, s{S_T+1}")
    a(f"s_add_u32 s{S_T+3}, s{S_T+3}, 32")
    a(f"v_add_u32 v{V_VW1}, s{S_T+3}, v{T0_}")
    a(f"s_add_u32 s{S_T+2}, s{S_VH}, {(206-80)*VST}")
    a(f"v_lshl_add_u32 v{T2_}, v2, 3, s{S_T+2}")
    a(f"v_cndmask_b32 v{V_VL0}, v{V_VW0}, v{T2_}, s[{S_M15}:{S_M15+1}]")
    a(f"v_add_u32 v{T2_}, 32, v{T2_}")
    a(f"v_cndmask_b32 v{V_VL1}, v{V_VW1}, v{T2_}, s[{S_M15}:{S_M15+1}]")
    a(f"v_lshrrev_b32 v{T2_}, 2, v0")
    a(f"v_mul_u32_u24 v{T2_}, {VST}, v{T2_}")
    a(f"v_and_b32 v{T1_}, 3, v0")
    a(f"v_lshl_add_u32 v{T2_}, v{T1_}, 3, v{T2_}")
    a(f"v_add_u32 v{V_VR}, s{S_T}, v{T2_}")
    a(f"s_mul_i32 s{S_T+2}, s{S_TH}, 95")
    a(f"s_add_u32 s{S_T+2}, s{S_T+2}, s{S_T0}")
    a(f"v_add_u32 v{T0_}, s{S_T+2}, v1")
    a(f"v_lshlrev_b32 v{V_R2}, 2, v{T0_}")
    a(f"v_lshrrev_b32 v{T1_}, 4, v{T0_}")
    a(f"s_mov_b32 s{S_T+3}, {TILE_STRIDE}")
    a(f"v_mul_lo_u32 v{T1_}, v{T1_}, s{S_T+3}")
    a(f"v_and_b32 v{T0_}, 15, v{T0_}")
    a(f"v_lshl_add_u32 v{T0_}, v2, 4, v{T0_}")
    a(f"v_lshl_add_u32 v{T1_}, v{T0_}, 4, v{T1_}")
    a(f"s_lshl_b32 s{S_T+3}, s{S_HP}, 1")
    a(f"s_add_u32 s{S_T+3}, s{S_T+3}, s{S_HD}")
    a(f"s_add_u32 s{S_T+3}, s{S_T+3}, 56")
    a(f"s_lshl_b32 s{S_T+3}, s{S_T+3}, 10")
    a(f"v_add_u32 v{V_SO}, s{S_T+3}, v{T1_}")
    a(f"v_mov_b32 v{T0_}, {OOB}")
    a(f"v_cndmask_b32 v{V_SOL}, v{V_SO}, v{T0_}, s[{S_M15}:{S_M15+1}]")
    a(f"v_cndmask_b32 v{V_R2L}, v{V_R2}, v{T0_}, s[{S_M15}:{S_M15+1}]")
    srd(a, SRD_O, 12, A2_BYTES)
    a(f"s_add_u32 s{SRD_B}, s12, {R2_OFF}")
    a(f"s_addc_u32 s{SRD_B+1}, s13, 0")
    a(f"s_mov_b32 s{SRD_B+2}, 8192")
    a(f"s_mov_b32 s{SRD_B+3}, 0x00020000")
    a(f"s_mov_b32 s{S_R}, 0")
    a(f"s_mov_b32 s{S_IT}, 0")
    def xaddr(ks):
        return [f"v_add_u32 v{V_XA}, s{S_R}, v{V_XB+ks}",
                f"v_add_u32 v{V_XH}, s{S_R}, v{V_HB+ks}",
                f"v_cndmask_b32 v{V_XL}, v{V_XA}, v{V_ONES5}, s[{S_M15}:{S_M15+1}]",
                f"v_cndmask_b32 v{V_XH}, v{V_XH}, v{V_ONES0}, s[{S_M0L}:{S_M0L+1}]"]
    def waddr():
        return [f"v_add_u32 v{V_WA}, s{S_R}, v{V_WB}", f"v_add_u32 v{V_WA+1}, s{S_R}, v{V_WB+1}"]
    def wread(b, ks, k):
        f, hf = k >> 1, k & 1
        return f"ds_read_b64_tr_b16 {vr(wf(b,f)+2*hf,2)}, v{V_WA+(f&1)} offset:{12288*ks+4096*(f>>1)+512*hf}"
    def xread(j):
        if j == 6: return f"ds_read_b128 {vr(xf(6),4)}, v{V_XH}"
        return f"ds_read_b128 {vr(xf(j),4)}, v{V_XL if j==5 else V_XA} offset:{2048*j}"
    a.extend(xaddr(0)); a.extend(waddr())
    prefetch_a(a, PFV, PFV, "Q_PFA")
    a.stamp(2)
    a("s_barrier")
    a.stamp(3)
    for k in range(12): a(wread(0, 0, k))
    for j in range(7): a(xread(j))
    a.drain()
    a.stamp(4)
    a.label("Q_LOOP")
    order = [0, 6, 1, 2, 3, 4, 5]
    top = [("w", 0, 11)] + [("x", 0, 4), ("x", 0, 5)]
    a.q = list(top)
    for p in range(2):
        fill = []
        if p == 1:
            fill += [[f"s_add_u32 s{S_R}, s{S_R}, {Q_SLOT}", f"s_cmp_ge_u32 s{S_R}, {3*Q_SLOT}"],
                     [f"s_cselect_b32 s{S_R}, 0, s{S_R}"] + xaddr(0)[:1], xaddr(0)[1:3], xaddr(0)[3:] + waddr()[:1], waddr()[1:]]
        else:
            fill += [xaddr(1)[:2], xaddr(1)[2:]]
        wk = 0
        for n, j in enumerate(order):
            if n == 0: a.need(("x", p, j), ("w", p, 11))
            else: a.need(("x", p, j))
            if j == 6:
                a(mfma(ACCH, wf(p, 2), xf(6)))
                a(mfma(ACCH + 4, wf(p, 4), xf(6)))
            else:
                for f in range(6):
                    a(mfma(acc(j, f), wf(p, f), xf(j)))
                    if n == 0 and fill:
                        a.extend(fill.pop(0))
                    elif n >= 2 and f in (0, 2, 4) and wk < 12:
                        a.lds(wread(p ^ 1, p ^ 1, wk), ("w", p ^ 1, wk)); wk += 1
                    if n == 6 and p == 1 and f == 0:
                        a(f"s_add_u32 s{S_IT}, s{S_IT}, 1")
                        a(f"s_cmp_lt_u32 s{S_IT}, 7")
            if n == 0 and p == 1:
                a.drain()
                a("s_barrier")
            a.lds(xread(j), ("x", p ^ 1, j))
        assert wk == 12 and not fill
    a.q = a.q[-3:]
    assert a.q == top, a.q
    a("s_cbranch_scc1 Q_LOOP")
    a.stamp(5)

    MR = V_XF
    CS = V_XF + 16
    KP = V_WF
    VP = V_WF + 28
    SEL = V_WF + 36
    TT = V_WF + 40
    A0, A1, A2 = V_XA, V_XL, V_XH
    a(f"v_lshlrev_b32 v{A0}, 3, v1")
    a(f"v_add_u32 v{A0}, {Q_STAT}, v{A0}")
    a(f"s_mul_i32 s{S_T}, s{S_TH}, {96*8}")
    a(f"v_add_u32 v{A1}, s{S_T}, v{A0}")
    a.drain()
    a(f"ds_read_b64 {vr(MR+12,2)}, v{A0}")
    for j in range(6):
        a(f"ds_read_b64 {vr(MR+2*j,2)}, v{A1} offset:{128*(j+1)}")
    a(f"v_mul_u32_u24 v{A0}, {KST}, v1")
    a(f"v_lshl_add_u32 v{A0}, v2, 4, v{A0}")
    a(f"s_lshl_b32 s{S_T}, s{S_TH}, 3")
    a(f"s_add_u32 s{S_T}, s{S_T}, s{S_KH}")
    a(f"v_add_u32 v{A0}, s{S_T}, v{A0}")
    a(f"s_mul_i32 s{S_T}, s{S_TH}, {95*VST}")
    a(f"s_add_u32 s{S_T}, s{S_T}, {16*VST}")
    a(f"v_subrev_u32 v{A1}, s{S_T}, v{V_VW0}")
    def bcast(src, lane):
        for r in range(8):
            a(f"v_mov_b32_dpp v{CS+r}, v{src+r} row_newbcast:{lane} row_mask:0xf bank_mask:0xf")
    def corr(accb, mr, dst):
        for r in range(0, 8, 2):
            a(f"v_pk_fma_f32 {vr(accb+r,2)}, {vr(CS+r,2)}, {vr(mr,2)}, {vr(accb+r,2)} op_sel:[0,0,0] op_sel_hi:[1,0,1]")
        for r in range(0, 8, 2):
            a(f"v_pk_mul_f32 {vr(accb+r,2)}, {vr(accb+r,2)}, {vr(mr,2)} op_sel:[0,1] op_sel_hi:[1,1]")
        for q in range(4):
            a(f"v_cvt_pk_bf16_f32 v{dst+q}, v{accb+2*q}, v{accb+2*q+1}")
    bcast(ACCH, 0)
    a("s_waitcnt lgkmcnt(6)")
    corr(ACCH, MR + 12, VP)
    a(f"ds_write_b64 v{A0}, {vr(VP,2)}")
    a(f"ds_write_b64 v{A1}, {vr(VP+2,2)}")
    a.estamp(1)
    bcast(acc(5, 4), 15)
    a("s_waitcnt lgkmcnt(2)")
    for j in range(6):
        d = VP + 4 * ((j + 1) & 1)
        corr(acc(j, 4), MR + 2 * j, d)
        a(f"ds_write_b64 v{V_VL0 if j==5 else V_VW0}, {vr(d,2)} offset:{16*VST*j}")
        a(f"ds_write_b64 v{V_VL1 if j==5 else V_VW1}, {vr(d+2,2)} offset:{16*VST*j}")
    a.estamp(2)
    bcast(acc(5, 2), 15)
    VA = [acc(0, 2), acc(1, 2)]
    for j in (4, 5, 0, 1, 2, 3):
        corr(acc(j, 2), MR + 2 * j, KP + 4 * (j + 1))
        if j >= 4:
            a(f"ds_write2_b64 v{V_KW5 if j==5 else V_KW4}, {vr(KP+4*(j+1),2)}, {vr(KP+4*(j+1)+2,2)} offset0:1 offset1:0")
        if j == 1:
            a("s_waitcnt lgkmcnt(0)")
            a("s_barrier")
            a(f"ds_read_b128 {vr(KP,4)}, v{V_KR}")
            for fr in range(2):
                for t in range(7):
                    a(f"ds_read_b64_tr_b16 {vr(VA[fr]+2*t,2)}, v{V_VR} offset:{16*VST*t+32*fr}")
    a.estamp(3)
    a(f"s_or_b32 s{S_T+3}, s{S_HP}, s{S_HD}")
    a(f"s_cmp_lg_u32 s{S_T+3}, 0")
    a("s_cbranch_scc1 Q_NOR2")
    for j in range(6):
        a(f"v_mul_f32 v{TT+j}, v{MR+2*j+1}, v{MR+2*j+1}")
    for j in range(6):
        a(f"buffer_store_dword v{TT+j}, v{V_R2L if j==5 else V_R2}, s[{SRD_B}:{SRD_B+3}], 0 offen offset:{64*j}")
    a.label("Q_NOR2")
    bcast(acc(5, 0), 15)
    QP = lambda j: acc(2, 2) + 4 * j if j < 4 else acc(3, 2) + 4 * (j - 4)
    SC = lambda j: acc(j, 0)
    SP = lambda j: acc(j, 1)
    for j in range(6):
        corr(acc(j, 0), MR + 2 * j, QP(j))
    a("s_waitcnt lgkmcnt(14)")
    for j in range(6):
        a(mfma(SC(j), KP + 4 * (j + 1), QP(j), "0"))
        a(mfma(SP(j), KP + 4 * j, QP(j), "0"))
        if j == 0:
            a(f"v_mov_b32 v{TT}, 0x0c0c0100")
            a(f"v_mov_b32 v{TT+1}, 0x01000c0c")
            a(f"v_cndmask_b32 v{TT}, v{TT}, v{TT+1}, s[{S_PAR}:{S_PAR+1}]")
            a(f"v_mov_b32 v{TT+1}, 0x0c0c0c0c")
        if j == 1:
            a(f"v_cndmask_b32 v{SEL}, v{TT}, v{TT+1}, s[{S_C0}:{S_C0+1}]")
            a(f"v_cndmask_b32 v{SEL+2}, v{TT+1}, v{TT}, s[{S_C0}:{S_C0+1}]")
            a(f"v_mov_b32 v{TT}, 0x0c0c0302")
            a(f"v_mov_b32 v{SEL+1}, 0x03020c0c")
        if j == 2:
            a(f"v_cndmask_b32 v{TT}, v{TT}, v{SEL+1}, s[{S_PAR}:{S_PAR+1}]")
            a(f"v_cndmask_b32 v{SEL+1}, v{TT}, v{TT+1}, s[{S_C1}:{S_C1+1}]")
            a(f"v_cndmask_b32 v{SEL+3}, v{TT+1}, v{TT}, s[{S_C1}:{S_C1+1}]")
    a(f"s_or_b32 s{S_T+3}, s{S_QB}, s{S_TH}")
    a(f"s_cmp_lg_u32 s{S_T+3}, 0")
    a("s_cbranch_scc1 Q_NOMASK")
    for r in range(4):
        a(f"v_mov_b32 v{SP(0)+r}, {hexf(-1e9 * 28 ** 0.5)}")
    a.label("Q_NOMASK")
    a.estamp(4)
    LT = [acc(4, 2) + 4 * j for j in range(4)] + [acc(5, 2), acc(5, 2) + 4]
    PB = lambda j: KP + 4 * j
    def stage(fn):
        for j in range(6): fn(j, LT[j])
    def pairs(fn):
        for j in (0, 2, 4): fn(LT[j] + 2, LT[j + 1] + 2)
    def s1(j, t):
        a(f"v_cndmask_b32 v{t}, v{SC(j)}, v{SC(j)+1}, s[{S_PAR}:{S_PAR+1}]")
        a(f"v_cndmask_b32 v{t+1}, v{SC(j)+2}, v{SC(j)+3}, s[{S_PAR}:{S_PAR+1}]")
        a(f"v_cndmask_b32 v{t+2}, v{SP(j)}, v{SP(j)+1}, s[{S_PAR}:{S_PAR+1}]")
        a(f"v_cndmask_b32 v{t+3}, v{SP(j)+2}, v{SP(j)+3}, s[{S_PAR}:{S_PAR+1}]")
        a(f"v_cndmask_b32 v{t}, v{t+2}, v{t}, s[{S_C0}:{S_C0+1}]")
        a(f"v_cndmask_b32 v{t+1}, v{t+3}, v{t+1}, s[{S_C1}:{S_C1+1}]")
        a(f"v_cvt_pk_bf16_f32 v{t+2}, v{t}, v{t+1}")
        a(f"v_lshlrev_b32 v{t}, 16, v{t+2}")
        a(f"v_and_b32 v{t+1}, s{S_HI}, v{t+2}")
        a(f"v_pk_mul_f32 {vr(t,2)}, {vr(t,2)}, s[{S_SC}:{S_SC+1}]")
        a(f"v_cvt_pk_bf16_f32 v{t+2}, v{t}, v{t+1}")
        a(f"v_lshlrev_b32 v{t}, 16, v{t+2}")
        a(f"v_and_b32 v{t+1}, s{S_HI}, v{t+2}")
        a(f"v_max_f32 v{t+2}, v{t}, v{t+1}")
    def pair_reduce(op, fin):
        a("s_nop 0")
        pairs(lambda x, y: a(f"v_permlane16_swap_b32 v{x}, v{y}"))
        pairs(lambda x, y: (a(f"{op} v{x}, v{x}, v{y}"), a(f"v_mov_b32 v{y}, v{x}")))
        pairs(lambda x, y: a(f"v_permlane32_swap_b32 v{x}, v{y}"))
        pairs(lambda x, y: a(f"{op} v{x}, v{x}, v{y}"))
        pairs(lambda x, y: fin(x))
        pairs(lambda x, y: a(f"v_mov_b32 v{y}, v{x}"))
        pairs(lambda x, y: a(f"v_permlane16_swap_b32 v{x}, v{y}"))
    stage(s1)
    pair_reduce("v_max_f32", lambda x: a(f"v_mul_f32 v{x}, {hexf(-1.4426950408889634)}, v{x}"))
    stage(lambda j, t: a(f"v_pk_fma_f32 {vr(t,2)}, {vr(t,2)}, s[{S_L2E}:{S_L2E+1}], {vr(t+2,2)} op_sel:[0,0,0] op_sel_hi:[1,1,0]"))
    stage(lambda j, t: (a(f"v_exp_f32 v{t}, v{t}"), a(f"v_exp_f32 v{t+1}, v{t+1}")))
    stage(lambda j, t: a(f"v_add_f32 v{t+2}, v{t}, v{t+1}"))
    pair_reduce("v_add_f32", lambda x: a(f"v_rcp_f32 v{x}, v{x}"))
    stage(lambda j, t: a(f"v_pk_mul_f32 {vr(t,2)}, {vr(t,2)}, {vr(t+2,2)} op_sel:[0,0] op_sel_hi:[1,0]"))
    a("s_waitcnt lgkmcnt(0)")
    def s3(j, t):
        a(f"v_cvt_pk_bf16_f32 v{t+3}, v{t}, v{t+1}")
        for q in range(4):
            a(f"v_perm_b32 v{PB(j)+q}, v{t+3}, v{t+3}, v{SEL+q}")
        if j >= 1:
            for fr in range(2):
                a(mfma(acc(j-1, fr), VA[fr] + 2 * (j - 1), PB(j-1), "0"))
    stage(s3)
    a("s_nop 0")
    for fr in range(2):
        a(mfma(acc(5, fr), VA[fr] + 10, PB(5), "0"))
    for j in range(6):
        o = QP(j)
        for q in range(4):
            a(f"v_cvt_pk_bf16_f32 v{o+q}, v{acc(j,0)+2*q}, v{acc(j,0)+2*q+1}")
        a(f"s_mov_b32 s{S_T}, {TILE_STRIDE*j}")
        a(f"buffer_store_dwordx4 {vr(o,4)}, v{V_SOL if j==5 else V_SO}, s[{SRD_O}:{SRD_O+3}], s{S_T} offen")
    a.stamp(6)
    a.stamp_out(0, 12, S_W)
    a("s_endpgm")

K2_STAGE = 32768
K2_RING = 5
K2_DIST = 3
K2_LDS = K2_STAGE * K2_RING

def gen_k2(a):
    SRD_A2, SRD_WD, SRD_WO, SRD_XX, SRD_OUT, SRD_R2 = 16, 20, 24, 16, 20, 24
    S_WV, S_H, S_MT, S_CT = 40, 41, 42, 43
    S_T = 50
    S_HI = 56
    a.raw(".globl k2_kernel\n.p2align 8\n.type k2_kernel,@function")
    a.label("k2_kernel")
    a("s_cmp_ge_u32 s2, 224")
    a("s_cbranch_scc1 K2_EXIT")
    a.stamp_init()
    a("s_load_dwordx2 s[4:5], s[0:1], 0")
    a("s_load_dwordx2 s[6:7], s[0:1], 16")
    a("s_load_dwordx4 s[8:11], s[0:1], 48")
    a("s_load_dwordx2 s[12:13], s[0:1], 72")
    a("v_lshrrev_b32 v1, 6, v0")
    a("v_and_b32 v0, 63, v0")
    a(f"v_readfirstlane_b32 s{S_WV}, v1")
    a("s_and_b32 s3, s2, 7")
    a("s_lshr_b32 s2, s2, 3")
    a(f"s_mul_i32 s{S_T}, s2, 37")
    a(f"s_lshr_b32 s{S_T}, s{S_T}, 8")
    a(f"s_mul_i32 s{S_T+1}, s{S_T}, 7")
    a(f"s_sub_u32 s{S_CT}, s2, s{S_T+1}")
    a(f"s_lshl_b32 s{S_MT}, s3, 2")
    a(f"s_add_u32 s{S_MT}, s{S_MT}, s{S_T}")
    a(f"s_and_b32 s{S_H}, s{S_WV}, 3")
    a("v_lshrrev_b32 v2, 4, v0")
    a("v_lshrrev_b32 v3, 3, v0")
    a(f"s_cmp_lt_u32 s{S_WV}, 4")
    a("s_cbranch_scc1 K2_COMPUTE")
    S_AO, S_LA, S_LW = 44, 46, 47
    V_AO, V_WD, V_WO = 5, 6, 7
    a("v_and_b32 v4, 7, v0")
    a(f"s_lshl_b32 s{S_T}, s{S_MT}, 2")
    a(f"s_add_u32 s{S_T}, s{S_T}, s{S_H}")
    a(f"s_mul_i32 s{S_AO}, s{S_T}, {TILE_STRIDE}")
    a(f"v_lshlrev_b32 v{V_AO}, 4, v0")
    a("v_lshlrev_b32 v8, 1, v2")
    a("v_xor_b32 v8, v8, v4")
    a(f"s_lshl_b32 s{S_T+1}, s{S_H}, 3")
    a(f"v_add_u32 v9, s{S_T+1}, v3")
    a("v_mul_u32_u24 v10, 896, v9")
    a("v_lshl_add_u32 v10, v8, 4, v10")
    a(f"s_lshl_b32 s{S_T+1}, s{S_CT}, 7")
    a(f"v_add_u32 v{V_WD}, s{S_T+1}, v10")
    a("v_cmp_le_u32 vcc, 28, v9")
    a(f"v_mov_b32 v8, {OOB}")
    a(f"s_lshl_b32 s{S_LA}, s{S_H}, 12")
    a(f"s_lshl_b32 s{S_LW}, s{S_H}, 10")
    a(f"v_cndmask_b32 v{V_WO}, v{V_WD}, v8, vcc")
    a("s_waitcnt lgkmcnt(0)")
    srd(a, SRD_A2, 12, A2_BYTES)
    srd(a, SRD_WD, 8, WD_BYTES)
    srd(a, SRD_WO, 6, WO_BYTES)
    a.vm_reset()
    def issue(s):
        slot = (s % K2_RING) * K2_STAGE
        a(f"s_add_u32 m0, s{S_LA}, {slot}")
        a(f"s_add_u32 s{S_T+2}, s{S_AO}, {4096*s}")
        for q in range(4):
            a.vm(dma(V_AO, SRD_A2, S_T + 2, 1024 * q), s)
        for q in range(4):
            a(f"s_add_u32 m0, s{S_LW}, {slot + 16384 + 4096*q}")
            if s < 14:
                a(f"s_mov_b32 s{S_T+3}, {(4*s+q)*32*896}")
                a.vm(dma(V_WD, SRD_WD, S_T + 3), s)
            else:
                a(f"s_mov_b32 s{S_T+3}, {(4*(s-14)+q)*28*896}")
                a.vm(dma(V_WO, SRD_WO, S_T + 3), s)
    a.stamp(1)
    D = K2_DIST
    for s in range(D): issue(s)
    a.stamp(2)
    for s in range(18):
        a.vneed(s)
        a("s_barrier")
        if s + D < 18: issue(s + D)
    a.stamp_out(1, 12, S_WV)
    a("s_endpgm")

    a.label("K2_COMPUTE")
    S_TW, S_CW, S_SL, S_IT, S_NL = 44, 45, 46, 47, 48
    V_AB, V_WB = 4, 5
    V_AA, V_WA = 7, 8
    V_XO = 10
    V_R2 = 12
    V_SO = 14
    V_X = 16
    V_F = 24
    V_G = 88
    V_S = 104
    V_T = 120
    a("s_setprio 2")
    a("v_and_b32 v1, 15, v0")
    a(f"s_lshr_b32 s{S_TW}, s{S_H}, 1")
    a(f"s_and_b32 s{S_CW}, s{S_H}, 1")
    a(f"s_mov_b32 s{S_HI}, 0xffff0000")
    a(f"s_mov_b32 s{S_NL}, {hexf(-1.4426950408889634)}")
    a(f"s_mov_b32 s{S_NL+1}, {hexf(-1.4426950408889634)}")
    a(f"s_lshl_b32 s{S_T}, s{S_MT}, 6")
    a(f"s_lshl_b32 s{S_T+1}, s{S_TW}, 5")
    a(f"s_add_u32 s{S_T}, s{S_T}, s{S_T+1}")
    a(f"v_add_u32 v24, s{S_T}, v1")
    a(f"v_lshlrev_b32 v25, 2, v24")
    a(f"v_mul_u32_u24 v24, 896, v24")
    a(f"s_lshl_b32 s{S_T+1}, s{S_CT}, 7")
    a(f"s_lshl_b32 s{S_T+2}, s{S_CW}, 6")
    a(f"s_add_u32 s{S_T+1}, s{S_T+1}, s{S_T+2}")
    a(f"v_add_u32 v24, s{S_T+1}, v24")
    a(f"v_lshl_add_u32 v{V_XO}, v2, 3, v24")
    a(f"v_add_u32 v{V_XO+1}, {16*896}, v{V_XO}")
    a("s_waitcnt lgkmcnt(0)")
    srd(a, SRD_XX, 4, X_BYTES)
    a(f"s_add_u32 s{SRD_R2}, s12, {R2_OFF}")
    a(f"s_addc_u32 s{SRD_R2+1}, s13, 0")
    a(f"s_mov_b32 s{SRD_R2+2}, 8192")
    a(f"s_mov_b32 s{SRD_R2+3}, 0x00020000")
    for t in range(2):
        for c in range(2):
            a(f"buffer_load_dwordx2 {vr(V_X+4*t+2*c,2)}, v{V_XO+t}, s[{SRD_XX}:{SRD_XX+3}], 0 offen offset:{32*c}")
    a(f"buffer_load_dword v{V_R2}, v25, s[{SRD_R2}:{SRD_R2+3}], 0 offen")
    a(f"buffer_load_dword v{V_R2+1}, v25, s[{SRD_R2}:{SRD_R2+3}], 0 offen offset:64")
    srd(a, SRD_OUT, 10, X_BYTES)
    a("v_and_b32 v26, 1, v2")
    a("v_lshl_add_u32 v24, v26, 5, v24")
    a("v_lshrrev_b32 v26, 1, v2")
    a(f"v_lshl_add_u32 v{V_SO}, v26, 4, v24")
    a(f"v_add_u32 v{V_SO+1}, {16*896}, v{V_SO}")
    a(f"s_lshl_b32 s{S_T}, s{S_TW}, 13")
    a(f"v_lshl_add_u32 v{V_AB}, v0, 4, s{S_T}")
    a("v_lshrrev_b32 v24, 2, v0")
    a("v_lshlrev_b32 v24, 7, v24")
    a("v_and_b32 v26, 3, v0")
    a("v_lshl_add_u32 v24, v26, 3, v24")
    a("v_and_b32 v26, 3, v3")
    a("v_lshl_add_u32 v24, v26, 5, v24")
    a(f"v_xor_b32 v24, s{S_T+2}, v24")
    a(f"v_add_u32 v{V_WB}, 16384, v24")
    a(f"v_xor_b32 v{V_WB+1}, 32, v{V_WB}")
    for r in range(0, 32, 2): a(f"v_mov_b64 {vr(V_G+r,2)}, 0")
    a(f"s_mov_b32 s{S_SL}, 0")
    a(f"s_mov_b32 s{S_IT}, 0")
    def stage_body(accb, fill):
        a(f"v_add_u32 v{V_AA}, s{S_SL}, v{V_AB}")
        a(f"v_add_u32 v{V_WA}, s{S_SL}, v{V_WB}")
        a(f"v_add_u32 v{V_WA+1}, s{S_SL}, v{V_WB+1}")
        a(f"s_add_u32 s{S_SL}, s{S_SL}, {K2_STAGE}")
        a(f"s_cmp_ge_u32 s{S_SL}, {K2_LDS}")
        a(f"s_cselect_b32 s{S_SL}, 0, s{S_SL}")
        a(f"s_add_u32 s{S_IT}, s{S_IT}, 1")
        a(f"s_cmp_lt_u32 s{S_IT}, 14")
        a("s_barrier")
        a.q = []
        fill = list(fill)
        per = (len(fill) + 19) // 20
        def put(n):
            for _ in range(n):
                if fill: a(fill.pop(0))
        def rd(q):
            b = V_F + 16 * q
            for t in range(2):
                a.lds(f"ds_read_b128 {vr(b+4*t,4)}, v{V_AA} offset:{4096*t+1024*q}", ("k", q))
            for c in range(2):
                for hf in range(2):
                    a.lds(f"ds_read_b64_tr_b16 {vr(b+8+4*c+2*hf,2)}, v{V_WA+c} offset:{4096*q+2048*hf}", ("k", q))
        rd(0); rd(1)
        put(4 * per)
        for q in range(4):
            a.need(("k", q))
            b = V_F + 16 * q
            n = 0
            for t in range(2):
                for c in range(2):
                    a(mfma(accb + 8 * t + 4 * c, b + 8 + 4 * c, b + 4 * t))
                    n += 1
                    if n == 1 and q + 2 < 4: rd(q + 2)
                    put(per)
        put(len(fill))
    a.stamp(2)
    a.label("K2C_D")
    stage_body(V_G, [])
    a("s_cbranch_scc1 K2C_D")
    a.stamp(4)
    F = ["s_waitcnt vmcnt(0)"]
    for p in range(8): F.append(f"v_pk_mul_f32 {vr(V_G+2*p,2)}, {vr(V_G+2*p,2)}, {vr(V_R2,2)} op_sel:[0,{p>>2}] op_sel_hi:[1,{p>>2}]")
    for p in range(8): F.append(f"v_cvt_pk_bf16_f32 v{V_T+p}, v{V_G+2*p}, v{V_G+2*p+1}")
    for p in range(8):
        F.append(f"v_lshlrev_b32 v{V_G+2*p}, 16, v{V_T+p}")
        F.append(f"v_and_b32 v{V_G+2*p+1}, s{S_HI}, v{V_T+p}")
    for p in range(8): F.append(f"v_pk_mul_f32 {vr(V_T+2*p,2)}, {vr(V_G+2*p,2)}, s[{S_NL}:{S_NL+1}]")
    for r in range(16): F.append(f"v_exp_f32 v{V_T+r}, v{V_T+r}")
    for r in range(16): F.append(f"v_add_f32 v{V_T+r}, 1.0, v{V_T+r}")
    for r in range(16): F.append(f"v_rcp_f32 v{V_T+r}, v{V_T+r}")
    for p in range(8): F.append(f"v_pk_mul_f32 {vr(V_G+2*p,2)}, {vr(V_G+2*p,2)}, {vr(V_T+2*p,2)}")
    for p in range(8): F.append(f"v_cvt_pk_bf16_f32 v{V_T+p}, v{V_G+2*p}, v{V_G+2*p+1}")
    for p in range(8):
        F.append(f"v_lshlrev_b32 v{V_G+2*p}, 16, v{V_T+p}")
        F.append(f"v_and_b32 v{V_G+2*p+1}, s{S_HI}, v{V_T+p}")
    for p in range(8):
        F.append(f"v_lshlrev_b32 v{V_T+2*p}, 16, v{V_X+p}")
        F.append(f"v_and_b32 v{V_T+2*p+1}, s{S_HI}, v{V_X+p}")
    n3 = (len(F) + 2) // 3
    for k in range(4):
        stage_body(V_S, F[k * n3:(k + 1) * n3])
    a.stamp(5)
    a("s_nop 4")
    P = V_F
    for p in range(8): a(f"v_cvt_pk_bf16_f32 v{P+p}, v{V_S+2*p}, v{V_S+2*p+1}")
    for p in range(8):
        a(f"v_lshlrev_b32 v{V_S+2*p}, 16, v{P+p}")
        a(f"v_and_b32 v{V_S+2*p+1}, s{S_HI}, v{P+p}")
    for p in range(8): a(f"v_pk_mul_f32 {vr(V_S+2*p,2)}, {vr(V_S+2*p,2)}, {vr(V_G+2*p,2)}")
    for p in range(8): a(f"v_cvt_pk_bf16_f32 v{P+p}, v{V_S+2*p}, v{V_S+2*p+1}")
    for p in range(8):
        a(f"v_lshlrev_b32 v{V_S+2*p}, 16, v{P+p}")
        a(f"v_and_b32 v{V_S+2*p+1}, s{S_HI}, v{P+p}")
    for p in range(8): a(f"v_pk_add_f32 {vr(V_S+2*p,2)}, {vr(V_S+2*p,2)}, {vr(V_T+2*p,2)}")
    for p in range(8): a(f"v_cvt_pk_bf16_f32 v{P+p}, v{V_S+2*p}, v{V_S+2*p+1}")
    for t in range(2):
        a(f"v_permlane16_swap_b32 v{P+4*t}, v{P+4*t+2}")
        a(f"v_permlane16_swap_b32 v{P+4*t+1}, v{P+4*t+3}")
        a(f"buffer_store_dwordx4 {vr(P+4*t,4)}, v{V_SO+t}, s[{SRD_OUT}:{SRD_OUT+3}], 0 offen")
    a.stamp(6)
    a.stamp_out(1, 12, S_WV)
    a.label("K2_EXIT")
    a("s_endpgm")

def kd(name, vgpr, sgpr):
    return f""".p2align 6
.amdhsa_kernel {name}
  .amdhsa_next_free_vgpr {vgpr}
  .amdhsa_next_free_sgpr {sgpr}
  .amdhsa_accum_offset {(vgpr+3)//4*4}
  .amdhsa_group_segment_fixed_size 0
  .amdhsa_kernarg_size 80
  .amdhsa_user_sgpr_count 2
  .amdhsa_user_sgpr_kernarg_segment_ptr 1
  .amdhsa_system_sgpr_workgroup_id_x 1
.end_amdhsa_kernel"""

def main(out=OUT):
    a = Asm()
    assert PF_LDS >= max(G_LDS, Q_LDS)
    k1_lds = PF_LDS + 256
    hdr = f"""; Two-kernel implementation (generated by gen/gen.py).
; k2: [h|o] @ [w_down|wo] + gated residual epilogue -> out
; @launch kernel=k1_kernel grid=(256,1,1) block=(512,1,1) lds={k1_lds}
; @launch kernel=k2_kernel grid=(224,1,1) block=(512,1,1) lds={K2_LDS}
.amdgcn_target "amdgcn-amd-amdhsa--gfx950"
.text"""
    a.raw(hdr)
    gen_k1(a)
    gen_k2(a)
    a.label("CODE_END")
    a.raw('.section .rodata,"a"')
    a.raw(kd("k1_kernel", 256, 100 if STAMP else 80))
    a.raw(kd("k2_kernel", 136, 100 if STAMP else 80))
    open(out, "w").write("\n".join(a.L) + "\n")

if __name__ == "__main__":
    args = [x for x in sys.argv[1:] if not x.startswith("--")]
    if "--stamp" in sys.argv: STAMP = True
    for x in sys.argv[1:]:
        if x.startswith("--f="): FLAGS.update(x[4:].split(","))
        if x.startswith("--set="):
            k, v = x[6:].split("="); globals()[k] = int(v)
    main(args[0] if args else OUT)
```

```python
import sys, struct

OUT = "recurrent_scan__sliding_local_dilated__glu_gated_bilinear__prompt.s"

X_BYTES = 2048 * 896
WQKV_BYTES = 448 * 2688
WO_BYTES = 448 * 896
WG_BYTES = 448 * 3584
WD_BYTES = 1792 * 896
TILE_STRIDE = 72 * 1024
A2_BYTES = 128 * TILE_STRIDE
R2_OFF = A2_BYTES
OOB = 0x40000000
STAMP = False
DBG_A = 5*8
DBG_B = 200*8
FLAGS = set()
STAMP_OFF = 16 << 20

def hexf(x):
    return "0x%08x" % struct.unpack("<I", struct.pack("<f", x))[0]

class Asm:
    def __init__(self):
        self.L = []
        self.q = []
    def __call__(self, s):
        self.L.append("    " + s)
    def label(self, s):
        self.L.append(s + ":")
    def raw(self, s):
        self.L.append(s)
    def extend(self, lst):
        for s in lst:
            if s.endswith(":"): self.L.append(s)
            else: self(s)
    def lds(self, s, tag):
        self(s); self.q.append(tag)
    def need(self, *tags):
        idx = max((i for i, t in enumerate(self.q) if t in tags), default=-1)
        if idx < 0: return
        n = len(self.q) - 1 - idx
        n = min(n, 15)
        self(f"s_waitcnt lgkmcnt({n})")
        self.q = self.q[len(self.q) - n:] if n else []
    def drain(self):
        self("s_waitcnt lgkmcnt(0)"); self.q = []
    def vm_reset(self):
        self.vq = []
    def vm(self, s, tag):
        self(s); self.vq.append(tag)
    def vneed(self, *tags):
        idx = max((i for i, t in enumerate(self.vq) if t in tags), default=-1)
        if idx < 0: return
        n = min(len(self.vq) - 1 - idx, 63)
        self(f"s_waitcnt vmcnt({n})")
        self.vq = self.vq[len(self.vq) - n:] if n else []
    def estamp(self, k):
        if 'epi' in FLAGS: self.stamp(k, True)
    def stamp(self, k, force=False):
        if 'epi' in FLAGS and 1 <= k <= 4 and not force: return
        if STAMP:
            self(f"{'s_memtime' if 'cyc' in FLAGS else 's_memrealtime'} s[{80+2*k}:{81+2*k}]")
            self("s_waitcnt lgkmcnt(0)")
    def stamp_init(self):
        if STAMP:
            for k in range(8): self(f"s_mov_b64 s[{80+2*k}:{81+2*k}], 0")
            self("s_mov_b32 s97, s2")
            self.stamp(0)
    def stamp_out(self, kern, wsp, wave):
        if STAMP and 'dbg' in FLAGS:
            self.nlab = getattr(self, 'nlab', 0) + 1
            lab = f"DBG_SKIP{self.nlab}"
            self("s_waitcnt vmcnt(0)")
            self.stamp(7)
            self("s_load_dwordx2 s[98:99], s[0:1], 64")
            self(f"s_lshl_b32 s96, s97, 3")
            self(f"s_add_u32 s96, s96, s{wave}")
            self(f"s_cmp_eq_u32 s96, {DBG_A}")
            self(f"s_cselect_b32 s97, 0, 32")
            self(f"s_cselect_b32 s96, {DBG_B}, s96")
            self(f"s_cmp_eq_u32 s96, {DBG_B}")
            self("s_waitcnt lgkmcnt(0)")
            self(f"s_cbranch_scc0 {lab}")
            self(f"v_mov_b32 v0, s97")
            for k in range(8):
                self(f"s_sub_u32 s96, s{80+2*k}, s80")
                self(f"v_mov_b32 v1, s96")
                self(f"global_store_dword v0, v1, s[98:99] offset:{4*k}")
            self.label(lab)
            return
        if STAMP:
            self("s_waitcnt vmcnt(0)")
            self.stamp(7)
            self(f"s_lshl_b32 s96, s97, 3")
            self(f"s_add_u32 s96, s96, s{wave}")
            self(f"s_lshl_b32 s96, s96, 5")
            self(f"s_add_u32 s96, s96, {STAMP_OFF + kern*131072}")
            self(f"v_mov_b32 v0, s96")
            for k in range(8):
                self(f"v_mov_b32 v1, s{80+2*k}")
                self(f"global_store_dword v0, v1, s[{wsp}:{wsp+1}] offset:{4*k}")

def vr(b, n=1):
    return f"v{b}" if n == 1 else f"v[{b}:{b+n-1}]"

def srd(a, base, ptr, nbytes):
    a(f"s_mov_b32 s{base}, s{ptr}")
    a(f"s_mov_b32 s{base+1}, s{ptr+1}")
    a(f"s_mov_b32 s{base+2}, {nbytes}")
    a(f"s_mov_b32 s{base+3}, 0x00020000")

def bf16_round(a, dst, src):
    a(f"v_cvt_pk_bf16_f32 {dst}, {src}, {src}")
    a(f"v_and_b32 {dst}, 0xffff0000, {dst}")

def mfma(d, A, B, c=None):
    return f"v_mfma_f32_16x16x32_bf16 {vr(d,4)}, {vr(A,4)}, {vr(B,4)}, {vr(d,4) if c is None else c}"

def dma(voff, srd_, soff, off=0):
    return f"buffer_load_dwordx4 v{voff}, s[{srd_}:{srd_+3}], s{soff} offen" + (f" offset:{off}" if off else "") + " lds"

def pk_bcast(reg):
    return (vr(reg & ~1, 2), reg & 1)

S_W = 14
S_K0 = 15
SRD_X = 16
SRD_A = 20
SRD_B = 24
SRD_O = 28
S_HI = 32
S_H = 33
S_M15 = 34
S_M0L = 36
S_T = 40

def gen_k1(a):
    a.raw(".globl k1_kernel\n.p2align 8\n.type k1_kernel,@function")
    a.label("k1_kernel")
    a("s_cmp_ge_u32 s2, 256")
    a("s_cbranch_scc1 K1_EXIT")
    a.stamp_init()
    a("s_load_dwordx4 s[4:7], s[0:1], 0")
    a("s_load_dwordx4 s[8:11], s[0:1], 32")
    a("s_load_dwordx2 s[12:13], s[0:1], 72")
    a("s_load_dwordx2 s[68:69], s[0:1], 16")
    a("s_load_dwordx2 s[70:71], s[0:1], 48")
    a("s_mov_b32 s72, s2")
    a("v_lshrrev_b32 v1, 6, v0")
    a("v_and_b32 v0, 63, v0")
    a(f"v_readfirstlane_b32 s{S_W}, v1")
    a("s_and_b32 s3, s2, 7")
    a("s_lshr_b32 s2, s2, 3")
    a("s_cmp_eq_u32 s3, 7")
    a(f"s_cselect_b32 s{S_K0}, 0, s3")
    a("v_and_b32 v1, 15, v0")
    a("v_lshrrev_b32 v2, 4, v0")
    a(f"s_mov_b32 s{S_HI}, 0xffff0000")
    a(f"s_and_b32 s{S_H}, s{S_W}, 3")
    a("s_cmp_ge_u32 s2, 21")
    a("s_cbranch_scc1 K1_QKV")
    gen_glu(a)
    a.label("K1_QKV")
    gen_qkv(a)
    a.label("K1_EXIT")
    a("s_endpgm")

def helper_common(a):
    a("s_setprio 3")
    a("v_lshrrev_b32 v3, 3, v0")
    a("v_and_b32 v4, 7, v0")
    a(f"s_and_b32 s{S_T}, s{S_H}, 1")
    a(f"s_lshl_b32 s{S_T}, s{S_T}, 2")
    a(f"v_add_u32 v6, s{S_T}, v2")
    a("v_xor_b32 v6, v6, v4")
    a("v_lshlrev_b32 v6, 4, v6")
    a("v_mul_u32_u24 v5, 896, v3")
    a("v_add_u32 v5, v5, v6")

def compute_common(a):
    a(f"s_mov_b32 s{S_M15}, 0x80008000")
    a(f"s_mov_b32 s{S_M15+1}, 0x80008000")

PF_LDS = 157712
PF_A = 1
PF_T = 9
PF_B = 1
PF_CODE = 1
SRD_P = 76
def prefetch_w2(a, nreg, vtmp, vdst, track):
    a(f"s_cmp_lt_u32 s{nreg}, 196")
    a(f"s_cselect_b32 s{SRD_P}, s70, s68")
    a(f"s_cselect_b32 s{SRD_P+1}, s71, s69")
    a(f"s_mov_b32 s{S_T+1}, {WO_BYTES}")
    a(f"s_cselect_b32 s{SRD_P+2}, {WD_BYTES}, s{S_T+1}")
    a(f"s_cselect_b32 s{S_T+1}, 0, 196")
    a(f"s_mov_b32 s{SRD_P+3}, 0x00020000")
    a(f"s_sub_u32 s{S_T+1}, s{nreg}, s{S_T+1}")
    a(f"s_lshl_b32 s{S_T+1}, s{S_T+1}, 13")
    a(f"s_mov_b32 m0, {PF_LDS}")
    a(f"v_lshlrev_b32 v{vtmp}, 7, v0")
    ins = f"buffer_load_dword v{vtmp}, s[{SRD_P}:{SRD_P+3}], s{S_T+1} offen lds"
    if track: a.vm(ins, "pf")
    else: a(ins)

def prefetch_b(a, vtmp, vdst):
    if not PF_B: return
    for q in range(2):
        a(f"s_lshl_b32 s{S_T}, s2, 2")
        a(f"s_add_u32 s{S_T}, s{S_T}, s{S_H}")
        a(f"s_lshl_b32 s{S_T}, s{S_T}, 1")
        a(f"s_add_u32 s{S_T}, s{S_T}, {q}")
        prefetch_w2(a, S_T, vtmp, vdst + q, True)

def prefetch_a(a, vtmp, vdst, lab):
    a(f"s_cmp_lg_u32 s{S_W}, 0")
    a(f"s_cbranch_scc1 {lab}_C")
    if PF_A: prefetch_w2(a, 72, vtmp, vdst, False)
    a(f"s_branch {lab}_D")
    a.label(f"{lab}_C")
    if PF_CODE:
        a(f"s_getpc_b64 s[{SRD_P}:{SRD_P+1}]")
        a.label(f"{lab}_PC")
        a(f"s_sub_u32 s{SRD_P}, s{SRD_P}, {lab}_PC - k1_kernel")
        a(f"s_subb_u32 s{SRD_P+1}, s{SRD_P+1}, 0")
        a(f"s_mov_b32 s{SRD_P+2}, CODE_END - k1_kernel")
        a(f"s_mov_b32 s{SRD_P+3}, 0x00020000")
        a(f"s_sub_u32 s{S_T+1}, s{S_W}, 1")
        a(f"s_lshl_b32 s{S_T+1}, s{S_T+1}, 13")
        a(f"s_mov_b32 m0, {PF_LDS}")
        a(f"v_lshlrev_b32 v{vtmp}, 7, v0")
        a(f"buffer_load_dword v{vtmp}, s[{SRD_P}:{SRD_P+3}], s{S_T+1} offen lds")
    a.label(f"{lab}_D")

G_XSLOT = 176 * 128
G_WBASE = 3 * G_XSLOT
G_WSLOT = 16384
G_MEANS = G_WBASE + 5 * G_WSLOT
G_ONES = G_MEANS + 768
G_LDS = G_ONES + 16
G_TOK = 175

def gen_glu(a):
    S_CS, S_T0 = 48, 49
    a(f"s_mul_i32 s{S_T}, s3, 21")
    a(f"s_add_u32 s{S_T}, s{S_T}, s2")
    a(f"s_mul_i32 s{S_CS}, s{S_T}, 171")
    a(f"s_lshr_b32 s{S_CS}, s{S_CS}, 11")
    a(f"s_mul_i32 s{S_T+1}, s{S_CS}, 12")
    a(f"s_sub_u32 s{S_T}, s{S_T}, s{S_T+1}")
    a(f"s_mul_i32 s{S_T0}, s{S_T}, {G_TOK}")
    a(f"s_cmp_lt_u32 s{S_W}, 4")
    a("s_cbranch_scc1 G_COMPUTE")

    S_XB, S_XK, S_WK, S_HL = 50, 51, 52, 53
    V_XG, V_WG0, V_WG1 = 5, 6, 7
    V_RB = 8
    V_ONE = 12
    V_SD = 16
    V_SUM = 28
    helper_common(a)
    a(f"s_lshl_b32 s{S_HL}, s{S_H}, 10")
    a(f"s_lshl_b32 s{S_T}, s{S_H}, 3")
    a(f"s_add_u32 s{S_T}, s{S_T}, s{S_T0}")
    a(f"s_mul_i32 s{S_XB}, s{S_T}, 896")
    a(f"s_lshr_b32 s{S_T}, s{S_H}, 1")
    a(f"s_lshl_b32 s{S_T}, s{S_T}, 2")
    a(f"v_or_b32 v10, s{S_T}, v2")
    a("v_lshlrev_b32 v10, 1, v10")
    a("v_xor_b32 v10, v10, v1")
    a("v_lshlrev_b32 v10, 4, v10")
    a(f"s_lshl_b32 s{S_T}, s{S_H}, 2")
    a(f"v_add_u32 v11, s{S_T}, v2")
    a(f"v_mul_u32_u24 v{V_WG0}, 3584, v11")
    a(f"s_lshl_b32 s{S_T}, s{S_CS}, 8")
    a(f"v_add3_u32 v{V_WG0}, v{V_WG0}, v10, s{S_T}")
    a(f"v_add_u32 v{V_WG1}, {16*3584}, v{V_WG0}")
    a(f"s_lshl_b32 s{S_XK}, s{S_K0}, 7")
    a(f"s_mul_i32 s{S_WK}, s{S_K0}, {2*114688}")
    a("s_waitcnt lgkmcnt(0)")
    srd(a, SRD_X, 4, X_BYTES)
    srd(a, SRD_A, 8, WG_BYTES)
    srd(a, SRD_B, 10, WG_BYTES)
    a.vm_reset()
    def issue_x(S):
        base = (S % 3) * G_XSLOT
        lab = f"G_XSKIP{S}"
        a(f"s_add_u32 s{S_T+2}, s{S_XK}, s{S_XB}")
        a(f"s_cmp_ge_u32 s{S_H}, 2")
        a(f"s_cbranch_scc1 {lab}")
        a(f"s_add_u32 m0, s{S_HL}, {base + 4096*5}")
        a(f"s_add_u32 s{S_T+3}, s{S_T+2}, {5*32*896}")
        a(dma(V_XG, SRD_X, S_T+3))
        a.label(lab)
        for j in range(5):
            a(f"s_add_u32 m0, s{S_HL}, {base + 4096*j}")
            a(f"s_add_u32 s{S_T+3}, s{S_T+2}, {j*32*896}")
            a.vm(dma(V_XG, SRD_X, S_T+3), ("X", S))
        a(f"s_add_u32 s{S_XK}, s{S_XK}, 128")
        a(f"s_cmp_ge_u32 s{S_XK}, 896")
        a(f"s_cselect_b32 s{S_XK}, 0, s{S_XK}")
    def issue_w(t):
        base = G_WBASE + (t % 5) * G_WSLOT
        for q, (v, sd) in enumerate(((V_WG0, SRD_A), (V_WG1, SRD_A), (V_WG0, SRD_B), (V_WG1, SRD_B))):
            a(f"s_add_u32 m0, s{S_HL}, {base + 4096*q}")
            a("s_nop 0")
            a.vm(dma(v, sd, S_WK), ("W", t))
        a(f"s_add_u32 s{S_WK}, s{S_WK}, 114688")
        if t & 1:
            a(f"s_cmp_ge_u32 s{S_WK}, {14*114688}")
            a(f"s_cselect_b32 s{S_WK}, 0, s{S_WK}")
    a.stamp(1)
    issue_x(0); issue_w(0); issue_w(1); issue_w(2)
    a("v_lshrrev_b32 v10, 1, v1")
    a("v_xor_b32 v10, v10, v2")
    a("v_lshlrev_b32 v10, 4, v10")
    a("v_lshl_add_u32 v10, v1, 7, v10")
    a(f"s_lshl_b32 s{S_T}, s{S_H}, 11")
    a(f"v_add_u32 v{V_RB}, s{S_T}, v10")
    a(f"v_xor_b32 v{V_RB+1}, 64, v{V_RB}")
    for r in range(4): a(f"v_mov_b32 v{V_ONE+r}, 0x3f803f80")
    for r in range(0, 12, 2): a(f"v_mov_b64 {vr(V_SUM+r,2)}, 0")
    a.stamp(2)
    plan = {-1: ["X1"], 0: ["W3", "X2"], 1: ["W4", "W5"], 2: ["X3", "W6"], 3: ["W7", "W8"]}
    for t in range(4, 9):
        plan[t] = ([f"X{t//2+2}"] if t % 2 == 0 else []) + [f"W{t+5}"]
    for t in range(-1, 13):
        a.vneed(("W", t + 1), ("X", (t + 1) // 2))
        a("s_barrier")
        if t == -1: a.stamp(3)
        S, ks = (t + 1) // 2, (t + 1) % 2
        for n in range(3):
            a(f"ds_read_b128 {vr(V_SD+4*n,4)}, v{V_RB+ks} offset:{(S%3)*G_XSLOT + 8192*n}")
        for it in plan.get(t, []):
            issue_x(int(it[1:])) if it[0] == "X" else issue_w(int(it[1:]))
        if t == PF_T: prefetch_b(a, 10, 40)
        a("s_waitcnt lgkmcnt(0)")
        for n in range(3):
            a(mfma(V_SUM + 4 * n, V_ONE, V_SD + 4 * n))
    a(f"s_lshl_b32 s{S_T}, s{S_H}, 6")
    a(f"s_add_u32 s{S_T}, s{S_T}, {G_MEANS}")
    a(f"v_lshl_add_u32 v10, v1, 2, s{S_T}")
    a("s_nop 5")
    for n in range(3):
        a(f"v_mul_f32 v{V_SD+n}, {hexf(-1.0/448)}, v{V_SUM+4*n}")
        bf16_round(a, f"v{V_SD+n}", f"v{V_SD+n}")
        a(f"ds_write_b32 v10, v{V_SD+n} offset:{256*n}")
    a("s_waitcnt lgkmcnt(0)")
    a.stamp(5)
    a("s_barrier")
    a.stamp_out(0, 12, S_W)
    a("s_endpgm")

    a.label("G_COMPUTE")
    S_XR, S_WR, S_IT = 50, 51, 52
    V_XB = 3
    V_WB = 5
    V_ONES = 7
    V_XA = 8
    V_XL = 10
    V_WA = 11
    V_SO, V_SOL = 13, 14
    V_T = 16
    V_XF = 24
    V_WF = 48
    V_ACC = 80
    def acc(j, f): return V_ACC + (j * 4 + f) * 4
    def xf(j): return V_XF + (j % 6) * 4
    def wf(b, f): return V_WF + b * 16 + f * 4
    compute_common(a)
    a("v_lshrrev_b32 v16, 1, v1")
    a("v_xor_b32 v16, v16, v2")
    a("v_lshlrev_b32 v16, 4, v16")
    a(f"v_lshl_add_u32 v{V_XB}, v1, 7, v16")
    a(f"v_xor_b32 v{V_XB+1}, 64, v{V_XB}")
    a("v_bfe_u32 v16, v0, 2, 2")
    a("v_and_b32 v17, 1, v2")
    a("v_lshl_or_b32 v17, v17, 2, v16")
    a(f"s_lshl_b32 s{S_T}, s{S_H}, 1")
    a(f"v_xor_b32 v17, s{S_T}, v17")
    a("v_lshlrev_b32 v17, 5, v17")
    a("v_lshl_add_u32 v16, v2, 3, v16")
    a("v_lshl_add_u32 v17, v16, 8, v17")
    a("v_and_b32 v16, 3, v0")
    a(f"v_lshl_add_u32 v{V_WB}, v16, 3, v17")
    a(f"v_xor_b32 v{V_WB+1}, 32, v{V_WB}")
    a(f"v_mov_b32 v{V_ONES}, {G_ONES - 10*2048}")
    a("v_mov_b32 v16, 0x3f803f80")
    a("v_mov_b32 v17, 0x3f803f80")
    a(f"v_mov_b32 v18, {G_ONES}")
    a("ds_write_b64 v18, v[16:17]")
    a("ds_write_b64 v18, v[16:17] offset:8")
    for r in range(0, 176, 2): a(f"v_mov_b64 {vr(V_ACC+r,2)}, 0")
    a(f"v_add_u32 v16, s{S_T0}, v1")
    a("v_lshrrev_b32 v17, 4, v16")
    a(f"s_mov_b32 s{S_T+1}, {TILE_STRIDE}")
    a(f"v_mul_lo_u32 v17, v17, s{S_T+1}")
    a("v_and_b32 v16, 15, v16")
    a("v_lshl_add_u32 v16, v2, 4, v16")
    a("v_lshl_add_u32 v17, v16, 4, v17")
    a(f"s_lshl_b32 s{S_T}, s{S_CS}, 2")
    a(f"s_add_u32 s{S_T}, s{S_T}, s{S_H}")
    a(f"s_lshl_b32 s{S_T}, s{S_T}, 10")
    a(f"v_add_u32 v{V_SO}, s{S_T}, v17")
    a(f"v_mov_b32 v16, {OOB}")
    a(f"v_cndmask_b32 v{V_SOL}, v{V_SO}, v16, s[{S_M15}:{S_M15+1}]")
    a(f"s_mov_b32 s{S_XR}, 0")
    a(f"s_mov_b32 s{S_WR}, {G_WBASE}")
    a(f"s_mov_b32 s{S_IT}, 0")
    a(f"v_mov_b32 v{V_XA}, v{V_XB}")
    a(f"v_add_u32 v{V_WA}, s{S_WR}, v{V_WB}")
    a(f"v_add_u32 v{V_WA+1}, s{S_WR}, v{V_WB+1}")
    a("s_waitcnt lgkmcnt(0)")
    srd(a, SRD_O, 12, A2_BYTES)
    prefetch_a(a, 16, 17, "G_PFA")
    def wread(b, k):
        f, hf = k >> 1, k & 1
        return f"ds_read_b64_tr_b16 {vr(wf(b,f)+2*hf,2)}, v{V_WA+(f&1)} offset:{8192*(f>>1)+1024*hf}"
    def xread(j, base):
        return f"ds_read_b128 {vr(xf(j),4)}, v{base} offset:{2048*j}"
    a.stamp(2)
    a("s_barrier")
    a.stamp(3)
    for k in range(8): a(wread(0, k))
    for j in range(6): a(xread(j, V_XA))
    a.drain()
    a.stamp(4)
    a.label("G_LOOP")
    a.q = [("x", 0, j) for j in (2, 3, 4)]
    for p in range(2):
        a("s_barrier")
        for j in range(11):
            a.need(("x", p, j))
            for f in range(4):
                a(mfma(acc(j, f), wf(p, f), xf(j)))
                if j == 0 and f == 0:
                    a(f"s_add_u32 s{S_WR}, s{S_WR}, {G_WSLOT}")
                    a(f"s_cmp_ge_u32 s{S_WR}, {G_WBASE+5*G_WSLOT}")
                if j == 0 and f == 1:
                    a(f"s_cselect_b32 s{S_WR}, {G_WBASE}, s{S_WR}")
                    a(f"v_add_u32 v{V_WA}, s{S_WR}, v{V_WB}")
                if j == 0 and f == 2:
                    a(f"v_add_u32 v{V_WA+1}, s{S_WR}, v{V_WB+1}")
                    a(f"v_cndmask_b32 v{V_XL}, v{V_XA+p}, v{V_ONES}, s[{S_M15}:{S_M15+1}]")
                if j == 2 and p == 1 and f == 0:
                    a(f"s_add_u32 s{S_XR}, s{S_XR}, {G_XSLOT}")
                    a(f"s_cmp_ge_u32 s{S_XR}, {3*G_XSLOT}")
                if j == 2 and p == 1 and f == 2:
                    a(f"s_cselect_b32 s{S_XR}, 0, s{S_XR}")
                if j == 3 and f == 0:
                    a(f"v_add_u32 v{V_XA+(p^1)}, s{S_XR}, v{V_XB+(p^1)}")
                if 1 <= j <= 8 and f == 1:
                    a.lds(wread(p ^ 1, j - 1), ("w", p ^ 1, j - 1))
                if j == 10 and p == 1 and f == 0:
                    a(f"s_add_u32 s{S_IT}, s{S_IT}, 1")
                    a(f"s_cmp_lt_u32 s{S_IT}, 7")
            if j <= 4:
                a.lds(xread(j + 6, V_XL if j + 6 == 10 else V_XA + p), ("x", p, j + 6))
            elif j == 5:
                a.lds(xread(5, V_XA + (p ^ 1)), ("x", p ^ 1, 5))
            else:
                a.lds(xread(j - 6, V_XA + (p ^ 1)), ("x", p ^ 1, j - 6))
        a.need(("w", p ^ 1, 7))
    assert a.q == [("x", 0, j) for j in (2, 3, 4)], a.q
    a("s_cbranch_scc1 G_LOOP")
    a.stamp(5)
    NM = V_XF
    OUTR = V_XF + 12
    CS = V_WF
    a(f"v_lshlrev_b32 v16, 2, v1")
    a(f"v_add_u32 v16, {G_MEANS}, v16")
    a.drain()
    for j in range(11):
        a(f"ds_read_b32 v{NM+j}, v16 offset:{64*j}")
    for r in range(16):
        a(f"v_mov_b32_dpp v{CS+r}, v{acc(10,0)+r} row_newbcast:15 row_mask:0xf bank_mask:0xf")
    a("s_waitcnt lgkmcnt(0)")
    for j in range(11):
        o = OUTR + 4 * (j & 1)
        nm, sel = pk_bcast(NM + j)
        for r in range(0, 16, 2):
            d = acc(j, 0) + r
            a(f"v_pk_fma_f32 {vr(d,2)}, {vr(CS+r,2)}, {nm}, {vr(d,2)} op_sel:[0,{sel},0] op_sel_hi:[1,{sel},1]")
        for r in range(0, 8, 2):
            d = acc(j, 0) + r
            a(f"v_pk_mul_f32 {vr(d,2)}, {vr(d,2)}, {vr(d+8,2)}")
        for q in range(4):
            a(f"v_cvt_pk_bf16_f32 v{o+q}, v{acc(j,0)+2*q}, v{acc(j,0)+2*q+1}")
        a(f"s_mov_b32 s{S_T}, {TILE_STRIDE*j}")
        a(f"buffer_store_dwordx4 {vr(o,4)}, v{V_SOL if j==10 else V_SO}, s[{SRD_O}:{SRD_O+3}], s{S_T} offen")
    a.stamp(6)
    a.stamp_out(0, 12, S_W)
    a("s_endpgm")

Q_XB = 208 * 128
Q_SLOT = Q_XB + 24576
Q_STAT = 3 * Q_SLOT
Q_ONES = Q_STAT + 2048
Q_SCR = Q_ONES + 16
Q_LDS = Q_SCR + 2048
Q_VA = 2 * 208 * 64
Q_TOK = 190

def gen_qkv(a):
    S_HP, S_T0, S_QB = 48, 49, 50
    a(f"s_mov_b32 s{S_HP}, s3")
    a(f"s_sub_u32 s{S_QB}, s2, 21")
    a(f"s_mul_i32 s{S_T0}, s{S_QB}, {Q_TOK}")
    a(f"s_cmp_lt_u32 s{S_W}, 4")
    a("s_cbranch_scc1 Q_COMPUTE")

    S_XB0, S_XB, S_XB3 = 51, 52, 53
    S_XK, S_WK, S_HL = 54, 55, 56
    V_XG, V_WG = 5, 6
    V_RB = 8
    V_RA = 16
    V_SL = 24
    V_TMP = 26
    V_SD = 32
    V_GR = 64
    helper_common(a)
    a(f"s_mov_b32 s{S_M15}, 0x80008000")
    a(f"s_mov_b32 s{S_M15+1}, 0x80008000")
    a(f"s_lshl_b32 s{S_HL}, s{S_H}, 10")
    a(f"s_lshl_b32 s{S_T}, s{S_H}, 3")
    a(f"s_add_u32 s{S_T}, s{S_T}, s{S_T0}")
    a(f"s_sub_i32 s{S_T}, s{S_T}, 16")
    a(f"s_mul_i32 s{S_XB}, s{S_T}, 896")
    a(f"s_cmp_lt_i32 s{S_T}, 0")
    a(f"s_cselect_b32 s{S_XB0}, {OOB}, s{S_XB}")
    a(f"s_lshr_b32 s{S_T+1}, s{S_H}, 1")
    a(f"s_mul_i32 s{S_T+1}, s{S_T+1}, 896")
    a(f"s_sub_u32 s{S_XB3}, s{S_XB}, s{S_T+1}")
    a(f"s_add_u32 s{S_XB3}, s{S_XB3}, {3*32*896}")
    a("v_and_b32 v10, 1, v2")
    a(f"s_and_b32 s{S_T}, s{S_H}, 1")
    a(f"s_lshl_b32 s{S_T}, s{S_T}, 1")
    a(f"v_or_b32 v10, s{S_T}, v10")
    a("v_lshlrev_b32 v10, 1, v10")
    a("v_xor_b32 v10, v10, v4")
    a(f"s_lshl_b32 s{S_T}, s{S_H}, 3")
    a(f"v_add_u32 v11, s{S_T}, v3")
    a(f"v_mul_u32_u24 v11, 2688, v11")
    a(f"s_mul_i32 s{S_T}, s{S_HP}, 112")
    a(f"v_lshl_add_u32 v11, v10, 4, v11")
    a(f"v_add_u32 v11, s{S_T}, v11")
    a("v_cmp_eq_u32 vcc, 7, v10")
    a(f"v_mov_b32 v12, {OOB}")
    a(f"s_lshl_b32 s{S_XK}, s{S_K0}, 7")
    a(f"s_mul_i32 s{S_WK}, s{S_K0}, {64*2688}")
    a(f"v_cndmask_b32 v{V_WG}, v11, v12, vcc")
    a("s_waitcnt lgkmcnt(0)")
    srd(a, SRD_X, 4, X_BYTES)
    srd(a, SRD_A, 6, WQKV_BYTES)
    a.vm_reset()
    def issue_x(S):
        base = (S % 3) * Q_SLOT
        lab = f"Q_XSKIP{S}"
        a(f"s_add_u32 s{S_T+5}, s{S_XK}, s{S_XB}")
        a(f"s_cmp_ge_u32 s{S_H}, 2")
        a(f"s_cbranch_scc1 {lab}")
        a(f"s_add_u32 m0, s{S_HL}, {base + 4096*6}")
        a(f"s_add_u32 s{S_T+3}, s{S_T+5}, {(6*32-1)*896}")
        a(dma(V_XG, SRD_X, S_T+3))
        a.label(lab)
        for j in range(6):
            a(f"s_add_u32 m0, s{S_HL}, {base + 4096*j}")
            if j == 0: a(f"s_add_u32 s{S_T+3}, s{S_XK}, s{S_XB0}")
            elif j == 3: a(f"s_add_u32 s{S_T+3}, s{S_XK}, s{S_XB3}")
            else: a(f"s_add_u32 s{S_T+3}, s{S_T+5}, {(j*32-(1 if j>=4 else 0))*896}")
            a.vm(dma(V_XG, SRD_X, S_T+3), ("X", S))
        a(f"s_add_u32 s{S_XK}, s{S_XK}, 128")
        a(f"s_cmp_ge_u32 s{S_XK}, 896")
        a(f"s_cselect_b32 s{S_XK}, 0, s{S_XK}")
    def issue_w(S):
        base = (S % 3) * Q_SLOT
        for q in range(6):
            a(f"s_add_u32 m0, s{S_HL}, {base + Q_XB + 4096*q}")
            a(f"s_add_u32 s{S_T+3}, s{S_WK}, {(q//3)*32*2688 + (q%3)*896}")
            a.vm(dma(V_WG, SRD_A, S_T+3), ("W", S))
        a(f"s_add_u32 s{S_WK}, s{S_WK}, {64*2688}")
        a(f"s_cmp_ge_u32 s{S_WK}, {448*2688}")
        a(f"s_cselect_b32 s{S_WK}, 0, s{S_WK}")
    a.stamp(1)
    issue_x(0); issue_w(0); issue_x(1)
    a(f"s_mul_i32 s{S_T}, s{S_H}, 15")
    a(f"v_mov_b32 v{V_TMP+2}, {Q_ONES}")
    for n in range(4):
        a(f"s_add_u32 s{S_T+1}, s{S_T}, {60*n}")
        a(f"v_add_u32 v{V_TMP}, s{S_T+1}, v1")
        a(f"v_bfe_u32 v{V_TMP+1}, v{V_TMP}, 1, 3")
        a(f"v_xor_b32 v{V_TMP+1}, v{V_TMP+1}, v2")
        a(f"v_lshlrev_b32 v{V_TMP+1}, 4, v{V_TMP+1}")
        a(f"v_lshl_add_u32 v{V_TMP}, v{V_TMP}, 7, v{V_TMP+1}")
        a(f"v_xor_b32 v{V_TMP+1}, 64, v{V_TMP}")
        a(f"v_cndmask_b32 v{V_RB+2*n}, v{V_TMP}, v{V_TMP+2}, s[{S_M15}:{S_M15+1}]")
        a(f"v_cndmask_b32 v{V_RB+2*n+1}, v{V_TMP+1}, v{V_TMP+2}, s[{S_M15}:{S_M15+1}]")
    a(f"v_mov_b32 v{V_TMP}, {Q_SLOT}")
    a(f"v_cndmask_b32 v{V_SL}, v{V_TMP}, 0, s[{S_M15}:{S_M15+1}]")
    for r in range(0, 16, 2): a(f"v_mov_b64 {vr(V_GR+r,2)}, 0")
    a.stamp(2)
    plan = {0: ["W1", "X2"], 1: ["W2", "X3", "W3"]}
    for S in range(2, 5): plan[S] = [f"X{S+2}", f"W{S+2}"]
    for S in range(7):
        if S % 3 == 0: ra = V_RB
        else:
            src = V_RB if S % 3 == 1 else V_RA
            for r in range(8): a(f"v_add_u32 v{V_RA+r}, v{V_SL}, v{src+r}")
            ra = V_RA
        a.vneed(("W", S), ("X", S))
        a("s_barrier")
        for r in range(8):
            a(f"ds_read_b128 {vr(V_SD+4*r,4)}, v{ra+r}")
        for it in plan.get(S, []):
            issue_x(int(it[1:])) if it[0] == "X" else issue_w(int(it[1:]))
        if S == (PF_T + 1) // 2: prefetch_b(a, V_TMP, 80)
        a("s_waitcnt lgkmcnt(0)")
        for r in (0, 2, 4, 6, 1, 3, 5, 7):
            a(mfma(V_GR + 4 * (r >> 1), V_SD + 4 * r, V_SD + 4 * r))
    def lm(fn):
        m = 0
        for l in range(64):
            if fn(l & 15, l >> 4): m |= 1 << l
        return m
    def smask(reg, m):
        a(f"s_mov_b32 s{reg}, {m & 0xffffffff:#x}")
        a(f"s_mov_b32 s{reg+1}, {m >> 32:#x}")
    smask(60, lm(lambda i, g: (i & 1) == 1))
    smask(62, lm(lambda i, g: (i & 2) == 2))
    smask(64, lm(lambda i, g: g == (i >> 2)))
    smask(66, lm(lambda i, g: g == 3))
    a(f"s_lshl_b32 s{S_T}, s{S_H}, 9")
    a(f"s_add_u32 s{S_T}, s{S_T}, {Q_SCR}")
    a(f"v_lshl_add_u32 v{V_TMP}, v1, 3, s{S_T}")
    a(f"v_lshl_add_u32 v{V_TMP+1}, v0, 3, s{S_T}")
    for n in range(4):
        g0 = V_GR + 4 * n
        a(f"v_cndmask_b32 v{V_SD+2*n}, v{g0}, v{g0+1}, s[60:61]")
        a(f"v_cndmask_b32 v{V_SD+2*n+1}, v{g0+2}, v{g0+3}, s[60:61]")
        a(f"v_cndmask_b32 v{V_SD+2*n}, v{V_SD+2*n}, v{V_SD+2*n+1}, s[62:63]")
    a("s_mov_b64 exec, s[64:65]")
    for n in range(4): a(f"ds_write_b32 v{V_TMP}, v{V_SD+2*n} offset:{128*n+4}")
    a("s_mov_b64 exec, s[66:67]")
    for n in range(4): a(f"ds_write_b32 v{V_TMP}, v{V_GR+4*n+3} offset:{128*n}")
    a("s_mov_b64 exec, -1")
    SU, SQ = V_TMP + 2, V_TMP + 3
    a("s_waitcnt lgkmcnt(0)")
    a(f"ds_read_b64 {vr(SU,2)}, v{V_TMP+1}")
    a(f"s_mul_i32 s{S_T}, s{S_H}, 15")
    a(f"v_mul_u32_u24 v{V_TMP}, 60, v2")
    a(f"v_add3_u32 v{V_TMP}, v{V_TMP}, v1, s{S_T}")
    a(f"v_mov_b32 v{V_TMP+4}, 255")
    a(f"v_cndmask_b32 v{V_TMP}, v{V_TMP}, v{V_TMP+4}, s[{S_M15}:{S_M15+1}]")
    a(f"v_lshlrev_b32 v{V_TMP}, 3, v{V_TMP}")
    a(f"v_add_u32 v{V_TMP}, {Q_STAT}, v{V_TMP}")
    a(f"s_mov_b32 s{S_T+1}, {hexf(1.0/448)}")
    a("s_waitcnt lgkmcnt(0)")
    a(f"v_mul_f32 v{SU}, {hexf(-1.0/448)}, v{SU}")
    a(f"v_mul_f32 v{V_TMP+4}, v{SU}, v{SU}")
    a(f"v_fma_f32 v{SQ}, v{SQ}, s{S_T+1}, -v{V_TMP+4}")
    a(f"v_max_f32 v{SQ}, 0, v{SQ}")
    bf16_round(a, f"v{SU}", f"v{SU}")
    bf16_round(a, f"v{SQ}", f"v{SQ}")
    a(f"v_add_f32 v{SQ}, {hexf(1e-5)}, v{SQ}")
    bf16_round(a, f"v{SQ}", f"v{SQ}")
    a(f"v_sqrt_f32 v{SQ}, v{SQ}")
    a("s_nop 0")
    bf16_round(a, f"v{SQ}", f"v{SQ}")
    a(f"v_rcp_f32 v{SQ}, v{SQ}")
    a("s_nop 0")
    a(f"ds_write_b64 v{V_TMP}, {vr(SU,2)}")
    a("s_waitcnt lgkmcnt(0)")
    a.stamp(5)
    a("s_barrier")
    a.stamp_out(0, 12, S_W)
    a("s_endpgm")

    a.label("Q_COMPUTE")
    S_HD, S_TH = 51, 52
    S_R, S_IT = 53, 54
    S_PAR, S_C0, S_C1, S_SC, S_L2E = 56, 58, 60, 62, 64
    PFV = 28
    KST, VST = 80, 72
    V_XB = 3
    V_HB = 5
    V_WB = 7
    V_ONES5, V_ONES0 = 9, 10
    V_XA, V_XL, V_XH = 11, 12, 13
    V_WA = 14
    V_XF = 28
    V_WF = 56
    V_ACC = 104
    def acc(j, f): return V_ACC + (j * 6 + f) * 4
    ACCH = V_ACC + 144
    def xf(j): return V_XF + 4 * j
    def wf(b, f): return V_WF + b * 24 + f * 4
    compute_common(a)
    a(f"s_mov_b32 s{S_M0L}, 0x00010001")
    a(f"s_mov_b32 s{S_M0L+1}, 0x00010001")
    a(f"s_lshr_b32 s{S_HD}, s{S_H}, 1")
    a(f"s_and_b32 s{S_TH}, s{S_H}, 1")
    a("v_lshrrev_b32 v16, 1, v1")
    a("v_xor_b32 v16, v16, v2")
    a("v_lshlrev_b32 v16, 4, v16")
    a(f"v_lshl_add_u32 v{V_HB}, v1, 7, v16")
    a(f"v_xor_b32 v{V_HB+1}, 64, v{V_HB}")
    a(f"s_mul_i32 s{S_T}, s{S_TH}, {96*128}")
    a(f"s_add_u32 s{S_T}, s{S_T}, 2048")
    a(f"v_add_u32 v{V_XB}, s{S_T}, v{V_HB}")
    a(f"v_add_u32 v{V_XB+1}, s{S_T}, v{V_HB+1}")
    a("v_bfe_u32 v16, v0, 2, 2")
    a("v_lshl_add_u32 v17, v2, 3, v16")
    a("v_lshlrev_b32 v17, 7, v17")
    a(f"v_add_u32 v17, {Q_XB}, v17")
    a("v_bfe_u32 v18, v0, 3, 2")
    a("v_lshlrev_b32 v18, 5, v18")
    a("v_and_b32 v19, 3, v0")
    a("v_cmp_eq_u32 vcc, 3, v19")
    a(f"s_mul_i32 s{S_T}, s{S_HD}, 56")
    a(f"v_lshl_add_u32 v19, v19, 3, s{S_T}")
    a("v_xor_b32 v16, v19, v18")
    a("v_add_u32 v20, v16, v17")
    a("v_add_u32 v19, 32, v19")
    a("v_mov_b32 v16, 112")
    a("v_cndmask_b32 v19, v19, v16, vcc")
    a("v_xor_b32 v16, v19, v18")
    a("v_add_u32 v21, v16, v17")
    a(f"s_cmp_eq_u32 s{S_TH}, 0")
    a("s_cselect_b64 vcc, -1, 0")
    a(f"v_cndmask_b32 v{V_WB}, v21, v20, vcc")
    a(f"v_cndmask_b32 v{V_WB+1}, v20, v21, vcc")
    a(f"v_mov_b32 v{V_ONES5}, {Q_ONES - 5*2048}")
    a(f"v_mov_b32 v{V_ONES0}, {Q_ONES}")
    a("v_mov_b32 v16, 0x3f803f80")
    a("v_mov_b32 v17, 0x3f803f80")
    a(f"ds_write_b64 v{V_ONES0}, v[16:17]")
    a(f"ds_write_b64 v{V_ONES0}, v[16:17] offset:8")
    for r in range(0, 152, 2): a(f"v_mov_b64 {vr(V_ACC+r,2)}, 0")
    a(f"s_mov_b32 s{S_PAR}, 0xaaaaaaaa")
    a(f"s_mov_b32 s{S_PAR+1}, 0xaaaaaaaa")
    a(f"s_mov_b32 s{S_SC}, {hexf(28 ** -0.5)}")
    a(f"s_mov_b32 s{S_SC+1}, {hexf(28 ** -0.5)}")
    a(f"s_mov_b32 s{S_L2E}, {hexf(1.4426950408889634)}")
    a(f"s_mov_b32 s{S_L2E+1}, {hexf(1.4426950408889634)}")
    def lanemask(fn):
        m = 0
        for l in range(64):
            if fn(l & 15, l >> 4): m |= 1 << l
        return m
    c0 = lanemask(lambda i, g: 4 * g + (i & 1) <= i)
    c1 = lanemask(lambda i, g: 4 * g + 2 + (i & 1) <= i)
    a(f"s_mov_b32 s{S_C0}, {c0 & 0xffffffff:#x}")
    a(f"s_mov_b32 s{S_C0+1}, {c0 >> 32:#x}")
    a(f"s_mov_b32 s{S_C1}, {c1 & 0xffffffff:#x}")
    a(f"s_mov_b32 s{S_C1+1}, {c1 >> 32:#x}")
    V_KW4, V_KW5, V_VW0, V_VW1, V_VL0, V_VL1, V_KR, V_VR, V_SO, V_SOL, V_R2, V_R2L = range(16, 28)
    T0_, T1_, T2_ = V_XF, V_XF + 1, V_XF + 2
    S_KH, S_VH = S_T + 6, S_T + 7
    a(f"s_mul_i32 s{S_KH}, s{S_HD}, {208*KST}")
    a(f"s_mul_i32 s{S_VH}, s{S_HD}, {208*VST}")
    a(f"s_add_u32 s{S_VH}, s{S_VH}, {2*208*KST}")
    a("s_waitcnt lgkmcnt(0)")
    a(f"v_mul_u32_u24 v{T0_}, {KST}, v1")
    a(f"v_lshl_add_u32 v{T0_}, v2, 4, v{T0_}")
    a(f"s_mul_i32 s{S_T}, s{S_TH}, {95*KST}")
    a(f"s_add_u32 s{S_T}, s{S_T}, s{S_KH}")
    a(f"v_add_u32 v{V_KR}, s{S_T}, v{T0_}")
    a(f"v_add_u32 v{V_KW4}, {80*KST}, v{V_KR}")
    a(f"v_add_u32 v{V_KW5}, {96*KST}, v{V_KR}")
    a(f"s_add_u32 s{S_T+2}, s{S_KH}, {206*KST}")
    a(f"v_lshl_add_u32 v{T2_}, v2, 4, s{S_T+2}")
    a(f"v_cndmask_b32 v{V_KW5}, v{V_KW5}, v{T2_}, s[{S_M15}:{S_M15+1}]")
    a(f"v_mul_u32_u24 v{T0_}, {VST}, v1")
    a(f"v_lshl_add_u32 v{T0_}, v2, 3, v{T0_}")
    a(f"s_mul_i32 s{S_T}, s{S_TH}, {95*VST}")
    a(f"s_add_u32 s{S_T}, s{S_T}, s{S_VH}")
    a(f"s_lshl_b32 s{S_T+1}, s{S_TH}, 5")
    a(f"s_add_u32 s{S_T+2}, s{S_T}, {16*VST}")
    a(f"s_add_u32 s{S_T+3}, s{S_T+2}, s{S_T+1}")
    a(f"v_add_u32 v{V_VW0}, s{S_T+3}, v{T0_}")
    a(f"s_sub_u32 s{S_T+3}, s{S_T+2}, s{S_T+1}")
    a(f"s_add_u32 s{S_T+3}, s{S_T+3}, 32")
    a(f"v_add_u32 v{V_VW1}, s{S_T+3}, v{T0_}")
    a(f"s_add_u32 s{S_T+2}, s{S_VH}, {(206-80)*VST}")
    a(f"v_lshl_add_u32 v{T2_}, v2, 3, s{S_T+2}")
    a(f"v_cndmask_b32 v{V_VL0}, v{V_VW0}, v{T2_}, s[{S_M15}:{S_M15+1}]")
    a(f"v_add_u32 v{T2_}, 32, v{T2_}")
    a(f"v_cndmask_b32 v{V_VL1}, v{V_VW1}, v{T2_}, s[{S_M15}:{S_M15+1}]")
    a(f"v_lshrrev_b32 v{T2_}, 2, v0")
    a(f"v_mul_u32_u24 v{T2_}, {VST}, v{T2_}")
    a(f"v_and_b32 v{T1_}, 3, v0")
    a(f"v_lshl_add_u32 v{T2_}, v{T1_}, 3, v{T2_}")
    a(f"v_add_u32 v{V_VR}, s{S_T}, v{T2_}")
    a(f"s_mul_i32 s{S_T+2}, s{S_TH}, 95")
    a(f"s_add_u32 s{S_T+2}, s{S_T+2}, s{S_T0}")
    a(f"v_add_u32 v{T0_}, s{S_T+2}, v1")
    a(f"v_lshlrev_b32 v{V_R2}, 2, v{T0_}")
    a(f"v_lshrrev_b32 v{T1_}, 4, v{T0_}")
    a(f"s_mov_b32 s{S_T+3}, {TILE_STRIDE}")
    a(f"v_mul_lo_u32 v{T1_}, v{T1_}, s{S_T+3}")
    a(f"v_and_b32 v{T0_}, 15, v{T0_}")
    a(f"v_lshl_add_u32 v{T0_}, v2, 4, v{T0_}")
    a(f"v_lshl_add_u32 v{T1_}, v{T0_}, 4, v{T1_}")
    a(f"s_lshl_b32 s{S_T+3}, s{S_HP}, 1")
    a(f"s_add_u32 s{S_T+3}, s{S_T+3}, s{S_HD}")
    a(f"s_add_u32 s{S_T+3}, s{S_T+3}, 56")
    a(f"s_lshl_b32 s{S_T+3}, s{S_T+3}, 10")
    a(f"v_add_u32 v{V_SO}, s{S_T+3}, v{T1_}")
    a(f"v_mov_b32 v{T0_}, {OOB}")
    a(f"v_cndmask_b32 v{V_SOL}, v{V_SO}, v{T0_}, s[{S_M15}:{S_M15+1}]")
    a(f"v_cndmask_b32 v{V_R2L}, v{V_R2}, v{T0_}, s[{S_M15}:{S_M15+1}]")
    srd(a, SRD_O, 12, A2_BYTES)
    a(f"s_add_u32 s{SRD_B}, s12, {R2_OFF}")
    a(f"s_addc_u32 s{SRD_B+1}, s13, 0")
    a(f"s_mov_b32 s{SRD_B+2}, 8192")
    a(f"s_mov_b32 s{SRD_B+3}, 0x00020000")
    a(f"s_mov_b32 s{S_R}, 0")
    a(f"s_mov_b32 s{S_IT}, 0")
    def xaddr(ks):
        return [f"v_add_u32 v{V_XA}, s{S_R}, v{V_XB+ks}",
                f"v_add_u32 v{V_XH}, s{S_R}, v{V_HB+ks}",
                f"v_cndmask_b32 v{V_XL}, v{V_XA}, v{V_ONES5}, s[{S_M15}:{S_M15+1}]",
                f"v_cndmask_b32 v{V_XH}, v{V_XH}, v{V_ONES0}, s[{S_M0L}:{S_M0L+1}]"]
    def waddr():
        return [f"v_add_u32 v{V_WA}, s{S_R}, v{V_WB}", f"v_add_u32 v{V_WA+1}, s{S_R}, v{V_WB+1}"]
    def wread(b, ks, k):
        f, hf = k >> 1, k & 1
        return f"ds_read_b64_tr_b16 {vr(wf(b,f)+2*hf,2)}, v{V_WA+(f&1)} offset:{12288*ks+4096*(f>>1)+512*hf}"
    def xread(j):
        if j == 6: return f"ds_read_b128 {vr(xf(6),4)}, v{V_XH}"
        return f"ds_read_b128 {vr(xf(j),4)}, v{V_XL if j==5 else V_XA} offset:{2048*j}"
    a.extend(xaddr(0)); a.extend(waddr())
    prefetch_a(a, PFV, PFV, "Q_PFA")
    a.stamp(2)
    a("s_barrier")
    a.stamp(3)
    for k in range(12): a(wread(0, 0, k))
    for j in range(7): a(xread(j))
    a.drain()
    a.stamp(4)
    a.label("Q_LOOP")
    order = [0, 6, 1, 2, 3, 4, 5]
    top = [("w", 0, 11)] + [("x", 0, 4), ("x", 0, 5)]
    a.q = list(top)
    for p in range(2):
        fill = []
        if p == 1:
            fill += [[f"s_add_u32 s{S_R}, s{S_R}, {Q_SLOT}", f"s_cmp_ge_u32 s{S_R}, {3*Q_SLOT}"],
                     [f"s_cselect_b32 s{S_R}, 0, s{S_R}"] + xaddr(0)[:1], xaddr(0)[1:3], xaddr(0)[3:] + waddr()[:1], waddr()[1:]]
        else:
            fill += [xaddr(1)[:2], xaddr(1)[2:]]
        wk = 0
        for n, j in enumerate(order):
            if n == 0: a.need(("x", p, j), ("w", p, 11))
            else: a.need(("x", p, j))
            if j == 6:
                a(mfma(ACCH, wf(p, 2), xf(6)))
                a(mfma(ACCH + 4, wf(p, 4), xf(6)))
            else:
                for f in range(6):
                    a(mfma(acc(j, f), wf(p, f), xf(j)))
                    if n == 0 and fill:
                        a.extend(fill.pop(0))
                    elif n >= 2 and f in (0, 2, 4) and wk < 12:
                        a.lds(wread(p ^ 1, p ^ 1, wk), ("w", p ^ 1, wk)); wk += 1
                    if n == 6 and p == 1 and f == 0:
                        a(f"s_add_u32 s{S_IT}, s{S_IT}, 1")
                        a(f"s_cmp_lt_u32 s{S_IT}, 7")
            if n == 0 and p == 1:
                a.drain()
                a("s_barrier")
            a.lds(xread(j), ("x", p ^ 1, j))
        assert wk == 12 and not fill
    a.q = a.q[-3:]
    assert a.q == top, a.q
    a("s_cbranch_scc1 Q_LOOP")
    a.stamp(5)

    MR = V_XF
    CS = V_XF + 16
    KP = V_WF
    VP = V_WF + 28
    SEL = V_WF + 36
    TT = V_WF + 40
    A0, A1, A2 = V_XA, V_XL, V_XH
    a(f"v_lshlrev_b32 v{A0}, 3, v1")
    a(f"v_add_u32 v{A0}, {Q_STAT}, v{A0}")
    a(f"s_mul_i32 s{S_T}, s{S_TH}, {96*8}")
    a(f"v_add_u32 v{A1}, s{S_T}, v{A0}")
    a.drain()
    a(f"ds_read_b64 {vr(MR+12,2)}, v{A0}")
    for j in range(6):
        a(f"ds_read_b64 {vr(MR+2*j,2)}, v{A1} offset:{128*(j+1)}")
    a(f"v_mul_u32_u24 v{A0}, {KST}, v1")
    a(f"v_lshl_add_u32 v{A0}, v2, 4, v{A0}")
    a(f"s_lshl_b32 s{S_T}, s{S_TH}, 3")
    a(f"s_add_u32 s{S_T}, s{S_T}, s{S_KH}")
    a(f"v_add_u32 v{A0}, s{S_T}, v{A0}")
    a(f"s_mul_i32 s{S_T}, s{S_TH}, {95*VST}")
    a(f"s_add_u32 s{S_T}, s{S_T}, {16*VST}")
    a(f"v_subrev_u32 v{A1}, s{S_T}, v{V_VW0}")
    def bcast(src, lane):
        for r in range(8):
            a(f"v_mov_b32_dpp v{CS+r}, v{src+r} row_newbcast:{lane} row_mask:0xf bank_mask:0xf")
    def corr(accb, mr, dst):
        for r in range(0, 8, 2):
            a(f"v_pk_fma_f32 {vr(accb+r,2)}, {vr(CS+r,2)}, {vr(mr,2)}, {vr(accb+r,2)} op_sel:[0,0,0] op_sel_hi:[1,0,1]")
        for r in range(0, 8, 2):
            a(f"v_pk_mul_f32 {vr(accb+r,2)}, {vr(accb+r,2)}, {vr(mr,2)} op_sel:[0,1] op_sel_hi:[1,1]")
        for q in range(4):
            a(f"v_cvt_pk_bf16_f32 v{dst+q}, v{accb+2*q}, v{accb+2*q+1}")
    bcast(ACCH, 0)
    a("s_waitcnt lgkmcnt(6)")
    corr(ACCH, MR + 12, VP)
    a(f"ds_write_b64 v{A0}, {vr(VP,2)}")
    a(f"ds_write_b64 v{A1}, {vr(VP+2,2)}")
    a.estamp(1)
    bcast(acc(5, 4), 15)
    a("s_waitcnt lgkmcnt(2)")
    for j in range(6):
        d = VP + 4 * ((j + 1) & 1)
        corr(acc(j, 4), MR + 2 * j, d)
        a(f"ds_write_b64 v{V_VL0 if j==5 else V_VW0}, {vr(d,2)} offset:{16*VST*j}")
        a(f"ds_write_b64 v{V_VL1 if j==5 else V_VW1}, {vr(d+2,2)} offset:{16*VST*j}")
    a.estamp(2)
    bcast(acc(5, 2), 15)
    VA = [acc(0, 2), acc(1, 2)]
    for j in (4, 5, 0, 1, 2, 3):
        corr(acc(j, 2), MR + 2 * j, KP + 4 * (j + 1))
        if j >= 4:
            a(f"ds_write2_b64 v{V_KW5 if j==5 else V_KW4}, {vr(KP+4*(j+1),2)}, {vr(KP+4*(j+1)+2,2)} offset0:1 offset1:0")
        if j == 1:
            a("s_waitcnt lgkmcnt(0)")
            a("s_barrier")
            a(f"ds_read_b128 {vr(KP,4)}, v{V_KR}")
            for fr in range(2):
                for t in range(7):
                    a(f"ds_read_b64_tr_b16 {vr(VA[fr]+2*t,2)}, v{V_VR} offset:{16*VST*t+32*fr}")
    a.estamp(3)
    a(f"s_or_b32 s{S_T+3}, s{S_HP}, s{S_HD}")
    a(f"s_cmp_lg_u32 s{S_T+3}, 0")
    a("s_cbranch_scc1 Q_NOR2")
    for j in range(6):
        a(f"v_mul_f32 v{TT+j}, v{MR+2*j+1}, v{MR+2*j+1}")
    for j in range(6):
        a(f"buffer_store_dword v{TT+j}, v{V_R2L if j==5 else V_R2}, s[{SRD_B}:{SRD_B+3}], 0 offen offset:{64*j}")
    a.label("Q_NOR2")
    bcast(acc(5, 0), 15)
    QP = lambda j: acc(2, 2) + 4 * j if j < 4 else acc(3, 2) + 4 * (j - 4)
    SC = lambda j: acc(j, 0)
    SP = lambda j: acc(j, 1)
    for j in range(6):
        corr(acc(j, 0), MR + 2 * j, QP(j))
    a("s_waitcnt lgkmcnt(14)")
    for j in range(6):
        a(mfma(SC(j), KP + 4 * (j + 1), QP(j), "0"))
        a(mfma(SP(j), KP + 4 * j, QP(j), "0"))
        if j == 0:
            a(f"v_mov_b32 v{TT}, 0x0c0c0100")
            a(f"v_mov_b32 v{TT+1}, 0x01000c0c")
            a(f"v_cndmask_b32 v{TT}, v{TT}, v{TT+1}, s[{S_PAR}:{S_PAR+1}]")
            a(f"v_mov_b32 v{TT+1}, 0x0c0c0c0c")
        if j == 1:
            a(f"v_cndmask_b32 v{SEL}, v{TT}, v{TT+1}, s[{S_C0}:{S_C0+1}]")
            a(f"v_cndmask_b32 v{SEL+2}, v{TT+1}, v{TT}, s[{S_C0}:{S_C0+1}]")
            a(f"v_mov_b32 v{TT}, 0x0c0c0302")
            a(f"v_mov_b32 v{SEL+1}, 0x03020c0c")
        if j == 2:
            a(f"v_cndmask_b32 v{TT}, v{TT}, v{SEL+1}, s[{S_PAR}:{S_PAR+1}]")
            a(f"v_cndmask_b32 v{SEL+1}, v{TT}, v{TT+1}, s[{S_C1}:{S_C1+1}]")
            a(f"v_cndmask_b32 v{SEL+3}, v{TT+1}, v{TT}, s[{S_C1}:{S_C1+1}]")
    a(f"s_or_b32 s{S_T+3}, s{S_QB}, s{S_TH}")
    a(f"s_cmp_lg_u32 s{S_T+3}, 0")
    a("s_cbranch_scc1 Q_NOMASK")
    for r in range(4):
        a(f"v_mov_b32 v{SP(0)+r}, {hexf(-1e9 * 28 ** 0.5)}")
    a.label("Q_NOMASK")
    a.estamp(4)
    LT = [acc(4, 2) + 4 * j for j in range(4)] + [acc(5, 2), acc(5, 2) + 4]
    PB = lambda j: KP + 4 * j
    def stage(fn):
        for j in range(6): fn(j, LT[j])
    def pairs(fn):
        for j in (0, 2, 4): fn(LT[j] + 2, LT[j + 1] + 2)
    def s1(j, t):
        a(f"v_cndmask_b32 v{t}, v{SC(j)}, v{SC(j)+1}, s[{S_PAR}:{S_PAR+1}]")
        a(f"v_cndmask_b32 v{t+1}, v{SC(j)+2}, v{SC(j)+3}, s[{S_PAR}:{S_PAR+1}]")
        a(f"v_cndmask_b32 v{t+2}, v{SP(j)}, v{SP(j)+1}, s[{S_PAR}:{S_PAR+1}]")
        a(f"v_cndmask_b32 v{t+3}, v{SP(j)+2}, v{SP(j)+3}, s[{S_PAR}:{S_PAR+1}]")
        a(f"v_cndmask_b32 v{t}, v{t+2}, v{t}, s[{S_C0}:{S_C0+1}]")
        a(f"v_cndmask_b32 v{t+1}, v{t+3}, v{t+1}, s[{S_C1}:{S_C1+1}]")
        a(f"v_cvt_pk_bf16_f32 v{t+2}, v{t}, v{t+1}")
        a(f"v_lshlrev_b32 v{t}, 16, v{t+2}")
        a(f"v_and_b32 v{t+1}, s{S_HI}, v{t+2}")
        a(f"v_pk_mul_f32 {vr(t,2)}, {vr(t,2)}, s[{S_SC}:{S_SC+1}]")
        a(f"v_cvt_pk_bf16_f32 v{t+2}, v{t}, v{t+1}")
        a(f"v_lshlrev_b32 v{t}, 16, v{t+2}")
        a(f"v_and_b32 v{t+1}, s{S_HI}, v{t+2}")
        a(f"v_max_f32 v{t+2}, v{t}, v{t+1}")
    def pair_reduce(op, fin):
        a("s_nop 0")
        pairs(lambda x, y: a(f"v_permlane16_swap_b32 v{x}, v{y}"))
        pairs(lambda x, y: (a(f"{op} v{x}, v{x}, v{y}"), a(f"v_mov_b32 v{y}, v{x}")))
        pairs(lambda x, y: a(f"v_permlane32_swap_b32 v{x}, v{y}"))
        pairs(lambda x, y: a(f"{op} v{x}, v{x}, v{y}"))
        pairs(lambda x, y: fin(x))
        pairs(lambda x, y: a(f"v_mov_b32 v{y}, v{x}"))
        pairs(lambda x, y: a(f"v_permlane16_swap_b32 v{x}, v{y}"))
    stage(s1)
    pair_reduce("v_max_f32", lambda x: a(f"v_mul_f32 v{x}, {hexf(-1.4426950408889634)}, v{x}"))
    stage(lambda j, t: a(f"v_pk_fma_f32 {vr(t,2)}, {vr(t,2)}, s[{S_L2E}:{S_L2E+1}], {vr(t+2,2)} op_sel:[0,0,0] op_sel_hi:[1,1,0]"))
    stage(lambda j, t: (a(f"v_exp_f32 v{t}, v{t}"), a(f"v_exp_f32 v{t+1}, v{t+1}")))
    stage(lambda j, t: a(f"v_add_f32 v{t+2}, v{t}, v{t+1}"))
    pair_reduce("v_add_f32", lambda x: a(f"v_rcp_f32 v{x}, v{x}"))
    stage(lambda j, t: a(f"v_pk_mul_f32 {vr(t,2)}, {vr(t,2)}, {vr(t+2,2)} op_sel:[0,0] op_sel_hi:[1,0]"))
    a("s_waitcnt lgkmcnt(0)")
    def s3(j, t):
        a(f"v_cvt_pk_bf16_f32 v{t+3}, v{t}, v{t+1}")
        for q in range(4):
            a(f"v_perm_b32 v{PB(j)+q}, v{t+3}, v{t+3}, v{SEL+q}")
        if j >= 1:
            for fr in range(2):
                a(mfma(acc(j-1, fr), VA[fr] + 2 * (j - 1), PB(j-1), "0"))
    stage(s3)
    a("s_nop 0")
    for fr in range(2):
        a(mfma(acc(5, fr), VA[fr] + 10, PB(5), "0"))
    for j in range(6):
        o = QP(j)
        for q in range(4):
            a(f"v_cvt_pk_bf16_f32 v{o+q}, v{acc(j,0)+2*q}, v{acc(j,0)+2*q+1}")
        a(f"s_mov_b32 s{S_T}, {TILE_STRIDE*j}")
        a(f"buffer_store_dwordx4 {vr(o,4)}, v{V_SOL if j==5 else V_SO}, s[{SRD_O}:{SRD_O+3}], s{S_T} offen")
    a.stamp(6)
    a.stamp_out(0, 12, S_W)
    a("s_endpgm")

K2_STAGE = 32768
K2_RING = 5
K2_DIST = 3
K2_LDS = K2_STAGE * K2_RING

def gen_k2(a):
    SRD_A2, SRD_WD, SRD_WO, SRD_XX, SRD_OUT, SRD_R2 = 16, 20, 24, 16, 20, 24
    S_WV, S_H, S_MT, S_CT = 40, 41, 42, 43
    S_T = 50
    S_HI = 56
    a.raw(".globl k2_kernel\n.p2align 8\n.type k2_kernel,@function")
    a.label("k2_kernel")
    a("s_cmp_ge_u32 s2, 224")
    a("s_cbranch_scc1 K2_EXIT")
    a.stamp_init()
    a("s_load_dwordx2 s[4:5], s[0:1], 0")
    a("s_load_dwordx2 s[6:7], s[0:1], 16")
    a("s_load_dwordx4 s[8:11], s[0:1], 48")
    a("s_load_dwordx2 s[12:13], s[0:1], 72")
    a("v_lshrrev_b32 v1, 6, v0")
    a("v_and_b32 v0, 63, v0")
    a(f"v_readfirstlane_b32 s{S_WV}, v1")
    a("s_and_b32 s3, s2, 7")
    a("s_lshr_b32 s2, s2, 3")
    a(f"s_mul_i32 s{S_T}, s2, 37")
    a(f"s_lshr_b32 s{S_T}, s{S_T}, 8")
    a(f"s_mul_i32 s{S_T+1}, s{S_T}, 7")
    a(f"s_sub_u32 s{S_CT}, s2, s{S_T+1}")
    a(f"s_lshl_b32 s{S_MT}, s3, 2")
    a(f"s_add_u32 s{S_MT}, s{S_MT}, s{S_T}")
    a(f"s_and_b32 s{S_H}, s{S_WV}, 3")
    a("v_lshrrev_b32 v2, 4, v0")
    a("v_lshrrev_b32 v3, 3, v0")
    a(f"s_cmp_lt_u32 s{S_WV}, 4")
    a("s_cbranch_scc1 K2_COMPUTE")
    S_AO, S_LA, S_LW = 44, 46, 47
    V_AO, V_WD, V_WO = 5, 6, 7
    a("v_and_b32 v4, 7, v0")
    a(f"s_lshl_b32 s{S_T}, s{S_MT}, 2")
    a(f"s_add_u32 s{S_T}, s{S_T}, s{S_H}")
    a(f"s_mul_i32 s{S_AO}, s{S_T}, {TILE_STRIDE}")
    a(f"v_lshlrev_b32 v{V_AO}, 4, v0")
    a("v_lshlrev_b32 v8, 1, v2")
    a("v_xor_b32 v8, v8, v4")
    a(f"s_lshl_b32 s{S_T+1}, s{S_H}, 3")
    a(f"v_add_u32 v9, s{S_T+1}, v3")
    a("v_mul_u32_u24 v10, 896, v9")
    a("v_lshl_add_u32 v10, v8, 4, v10")
    a(f"s_lshl_b32 s{S_T+1}, s{S_CT}, 7")
    a(f"v_add_u32 v{V_WD}, s{S_T+1}, v10")
    a("v_cmp_le_u32 vcc, 28, v9")
    a(f"v_mov_b32 v8, {OOB}")
    a(f"s_lshl_b32 s{S_LA}, s{S_H}, 12")
    a(f"s_lshl_b32 s{S_LW}, s{S_H}, 10")
    a(f"v_cndmask_b32 v{V_WO}, v{V_WD}, v8, vcc")
    a("s_waitcnt lgkmcnt(0)")
    srd(a, SRD_A2, 12, A2_BYTES)
    srd(a, SRD_WD, 8, WD_BYTES)
    srd(a, SRD_WO, 6, WO_BYTES)
    a.vm_reset()
    def issue(s):
        slot = (s % K2_RING) * K2_STAGE
        a(f"s_add_u32 m0, s{S_LA}, {slot}")
        a(f"s_add_u32 s{S_T+2}, s{S_AO}, {4096*s}")
        for q in range(4):
            a.vm(dma(V_AO, SRD_A2, S_T + 2, 1024 * q), s)
        for q in range(4):
            a(f"s_add_u32 m0, s{S_LW}, {slot + 16384 + 4096*q}")
            if s < 14:
                a(f"s_mov_b32 s{S_T+3}, {(4*s+q)*32*896}")
                a.vm(dma(V_WD, SRD_WD, S_T + 3), s)
            else:
                a(f"s_mov_b32 s{S_T+3}, {(4*(s-14)+q)*28*896}")
                a.vm(dma(V_WO, SRD_WO, S_T + 3), s)
    a.stamp(1)
    D = K2_DIST
    for s in range(D): issue(s)
    a.stamp(2)
    for s in range(18):
        a.vneed(s)
        a("s_barrier")
        if s + D < 18: issue(s + D)
    a.stamp_out(1, 12, S_WV)
    a("s_endpgm")

    a.label("K2_COMPUTE")
    S_TW, S_CW, S_SL, S_IT, S_NL = 44, 45, 46, 47, 48
    V_AB, V_WB = 4, 5
    V_AA, V_WA = 7, 8
    V_XO = 10
    V_R2 = 12
    V_SO = 14
    V_X = 16
    V_F = 24
    V_G = 88
    V_S = 104
    V_T = 120
    a("s_setprio 2")
    a("v_and_b32 v1, 15, v0")
    a(f"s_lshr_b32 s{S_TW}, s{S_H}, 1")
    a(f"s_and_b32 s{S_CW}, s{S_H}, 1")
    a(f"s_mov_b32 s{S_HI}, 0xffff0000")
    a(f"s_mov_b32 s{S_NL}, {hexf(-1.4426950408889634)}")
    a(f"s_mov_b32 s{S_NL+1}, {hexf(-1.4426950408889634)}")
    a(f"s_lshl_b32 s{S_T}, s{S_MT}, 6")
    a(f"s_lshl_b32 s{S_T+1}, s{S_TW}, 5")
    a(f"s_add_u32 s{S_T}, s{S_T}, s{S_T+1}")
    a(f"v_add_u32 v24, s{S_T}, v1")
    a(f"v_lshlrev_b32 v25, 2, v24")
    a(f"v_mul_u32_u24 v24, 896, v24")
    a(f"s_lshl_b32 s{S_T+1}, s{S_CT}, 7")
    a(f"s_lshl_b32 s{S_T+2}, s{S_CW}, 6")
    a(f"s_add_u32 s{S_T+1}, s{S_T+1}, s{S_T+2}")
    a(f"v_add_u32 v24, s{S_T+1}, v24")
    a(f"v_lshl_add_u32 v{V_XO}, v2, 3, v24")
    a(f"v_add_u32 v{V_XO+1}, {16*896}, v{V_XO}")
    a("s_waitcnt lgkmcnt(0)")
    srd(a, SRD_XX, 4, X_BYTES)
    a(f"s_add_u32 s{SRD_R2}, s12, {R2_OFF}")
    a(f"s_addc_u32 s{SRD_R2+1}, s13, 0")
    a(f"s_mov_b32 s{SRD_R2+2}, 8192")
    a(f"s_mov_b32 s{SRD_R2+3}, 0x00020000")
    for t in range(2):
        for c in range(2):
            a(f"buffer_load_dwordx2 {vr(V_X+4*t+2*c,2)}, v{V_XO+t}, s[{SRD_XX}:{SRD_XX+3}], 0 offen offset:{32*c}")
    a(f"buffer_load_dword v{V_R2}, v25, s[{SRD_R2}:{SRD_R2+3}], 0 offen")
    a(f"buffer_load_dword v{V_R2+1}, v25, s[{SRD_R2}:{SRD_R2+3}], 0 offen offset:64")
    srd(a, SRD_OUT, 10, X_BYTES)
    a("v_and_b32 v26, 1, v2")
    a("v_lshl_add_u32 v24, v26, 5, v24")
    a("v_lshrrev_b32 v26, 1, v2")
    a(f"v_lshl_add_u32 v{V_SO}, v26, 4, v24")
    a(f"v_add_u32 v{V_SO+1}, {16*896}, v{V_SO}")
    a(f"s_lshl_b32 s{S_T}, s{S_TW}, 13")
    a(f"v_lshl_add_u32 v{V_AB}, v0, 4, s{S_T}")
    a("v_lshrrev_b32 v24, 2, v0")
    a("v_lshlrev_b32 v24, 7, v24")
    a("v_and_b32 v26, 3, v0")
    a("v_lshl_add_u32 v24, v26, 3, v24")
    a("v_and_b32 v26, 3, v3")
    a("v_lshl_add_u32 v24, v26, 5, v24")
    a(f"v_xor_b32 v24, s{S_T+2}, v24")
    a(f"v_add_u32 v{V_WB}, 16384, v24")
    a(f"v_xor_b32 v{V_WB+1}, 32, v{V_WB}")
    for r in range(0, 32, 2): a(f"v_mov_b64 {vr(V_G+r,2)}, 0")
    a(f"s_mov_b32 s{S_SL}, 0")
    a(f"s_mov_b32 s{S_IT}, 0")
    def stage_body(accb, fill):
        a(f"v_add_u32 v{V_AA}, s{S_SL}, v{V_AB}")
        a(f"v_add_u32 v{V_WA}, s{S_SL}, v{V_WB}")
        a(f"v_add_u32 v{V_WA+1}, s{S_SL}, v{V_WB+1}")
        a(f"s_add_u32 s{S_SL}, s{S_SL}, {K2_STAGE}")
        a(f"s_cmp_ge_u32 s{S_SL}, {K2_LDS}")
        a(f"s_cselect_b32 s{S_SL}, 0, s{S_SL}")
        a(f"s_add_u32 s{S_IT}, s{S_IT}, 1")
        a(f"s_cmp_lt_u32 s{S_IT}, 14")
        a("s_barrier")
        a.q = []
        fill = list(fill)
        per = (len(fill) + 19) // 20
        def put(n):
            for _ in range(n):
                if fill: a(fill.pop(0))
        def rd(q):
            b = V_F + 16 * q
            for t in range(2):
                a.lds(f"ds_read_b128 {vr(b+4*t,4)}, v{V_AA} offset:{4096*t+1024*q}", ("k", q))
            for c in range(2):
                for hf in range(2):
                    a.lds(f"ds_read_b64_tr_b16 {vr(b+8+4*c+2*hf,2)}, v{V_WA+c} offset:{4096*q+2048*hf}", ("k", q))
        rd(0); rd(1)
        put(4 * per)
        for q in range(4):
            a.need(("k", q))
            b = V_F + 16 * q
            n = 0
            for t in range(2):
                for c in range(2):
                    a(mfma(accb + 8 * t + 4 * c, b + 8 + 4 * c, b + 4 * t))
                    n += 1
                    if n == 1 and q + 2 < 4: rd(q + 2)
                    put(per)
        put(len(fill))
    a.stamp(2)
    a.label("K2C_D")
    stage_body(V_G, [])
    a("s_cbranch_scc1 K2C_D")
    a.stamp(4)
    F = ["s_waitcnt vmcnt(0)"]
    for p in range(8): F.append(f"v_pk_mul_f32 {vr(V_G+2*p,2)}, {vr(V_G+2*p,2)}, {vr(V_R2,2)} op_sel:[0,{p>>2}] op_sel_hi:[1,{p>>2}]")
    for p in range(8): F.append(f"v_cvt_pk_bf16_f32 v{V_T+p}, v{V_G+2*p}, v{V_G+2*p+1}")
    for p in range(8):
        F.append(f"v_lshlrev_b32 v{V_G+2*p}, 16, v{V_T+p}")
        F.append(f"v_and_b32 v{V_G+2*p+1}, s{S_HI}, v{V_T+p}")
    for p in range(8): F.append(f"v_pk_mul_f32 {vr(V_T+2*p,2)}, {vr(V_G+2*p,2)}, s[{S_NL}:{S_NL+1}]")
    for r in range(16): F.append(f"v_exp_f32 v{V_T+r}, v{V_T+r}")
    for r in range(16): F.append(f"v_add_f32 v{V_T+r}, 1.0, v{V_T+r}")
    for r in range(16): F.append(f"v_rcp_f32 v{V_T+r}, v{V_T+r}")
    for p in range(8): F.append(f"v_pk_mul_f32 {vr(V_G+2*p,2)}, {vr(V_G+2*p,2)}, {vr(V_T+2*p,2)}")
    for p in range(8): F.append(f"v_cvt_pk_bf16_f32 v{V_T+p}, v{V_G+2*p}, v{V_G+2*p+1}")
    for p in range(8):
        F.append(f"v_lshlrev_b32 v{V_G+2*p}, 16, v{V_T+p}")
        F.append(f"v_and_b32 v{V_G+2*p+1}, s{S_HI}, v{V_T+p}")
    for p in range(8):
        F.append(f"v_lshlrev_b32 v{V_T+2*p}, 16, v{V_X+p}")
        F.append(f"v_and_b32 v{V_T+2*p+1}, s{S_HI}, v{V_X+p}")
    n3 = (len(F) + 2) // 3
    for k in range(4):
        stage_body(V_S, F[k * n3:(k + 1) * n3])
    a.stamp(5)
    a("s_nop 4")
    P = V_F
    for p in range(8): a(f"v_cvt_pk_bf16_f32 v{P+p}, v{V_S+2*p}, v{V_S+2*p+1}")
    for p in range(8):
        a(f"v_lshlrev_b32 v{V_S+2*p}, 16, v{P+p}")
        a(f"v_and_b32 v{V_S+2*p+1}, s{S_HI}, v{P+p}")
    for p in range(8): a(f"v_pk_mul_f32 {vr(V_S+2*p,2)}, {vr(V_S+2*p,2)}, {vr(V_G+2*p,2)}")
    for p in range(8): a(f"v_cvt_pk_bf16_f32 v{P+p}, v{V_S+2*p}, v{V_S+2*p+1}")
    for p in range(8):
        a(f"v_lshlrev_b32 v{V_S+2*p}, 16, v{P+p}")
        a(f"v_and_b32 v{V_S+2*p+1}, s{S_HI}, v{P+p}")
    for p in range(8): a(f"v_pk_add_f32 {vr(V_S+2*p,2)}, {vr(V_S+2*p,2)}, {vr(V_T+2*p,2)}")
    for p in range(8): a(f"v_cvt_pk_bf16_f32 v{P+p}, v{V_S+2*p}, v{V_S+2*p+1}")
    for t in range(2):
        a(f"v_permlane16_swap_b32 v{P+4*t}, v{P+4*t+2}")
        a(f"v_permlane16_swap_b32 v{P+4*t+1}, v{P+4*t+3}")
        a(f"buffer_store_dwordx4 {vr(P+4*t,4)}, v{V_SO+t}, s[{SRD_OUT}:{SRD_OUT+3}], 0 offen")
    a.stamp(6)
    a.stamp_out(1, 12, S_WV)
    a.label("K2_EXIT")
    a("s_endpgm")

def kd(name, vgpr, sgpr):
    return f""".p2align 6
.amdhsa_kernel {name}
  .amdhsa_next_free_vgpr {vgpr}
  .amdhsa_next_free_sgpr {sgpr}
  .amdhsa_accum_offset {(vgpr+3)//4*4}
  .amdhsa_group_segment_fixed_size 0
  .amdhsa_kernarg_size 80
  .amdhsa_user_sgpr_count 2
  .amdhsa_user_sgpr_kernarg_segment_ptr 1
  .amdhsa_system_sgpr_workgroup_id_x 1
.end_amdhsa_kernel"""

def main(out=OUT):
    a = Asm()
    assert PF_LDS >= max(G_LDS, Q_LDS)
    k1_lds = PF_LDS + 256
    hdr = f"""; Two-kernel implementation (generated by gen/gen.py).
; k2: [h|o] @ [w_down|wo] + gated residual epilogue -> out
; @launch kernel=k1_kernel grid=(256,1,1) block=(512,1,1) lds={k1_lds}
; @launch kernel=k2_kernel grid=(224,1,1) block=(512,1,1) lds={K2_LDS}
.amdgcn_target "amdgcn-amd-amdhsa--gfx950"
.text"""
    a.raw(hdr)
    gen_k1(a)
    gen_k2(a)
    a.label("CODE_END")
    a.raw('.section .rodata,"a"')
    a.raw(kd("k1_kernel", 256, 102 if STAMP else 80))
    a.raw(kd("k2_kernel", 136, 102 if STAMP else 80))
    open(out, "w").write("\n".join(a.L) + "\n")

if __name__ == "__main__":
    args = [x for x in sys.argv[1:] if not x.startswith("--")]
    if "--stamp" in sys.argv: STAMP = True
    for x in sys.argv[1:]:
        if x.startswith("--f="): FLAGS.update(x[4:].split(","))
        if x.startswith("--set="):
            k, v = x[6:].split("="); globals()[k] = int(v)
    main(args[0] if args else OUT)
```

```python
import sys, re
STAMP_OFF = 16 << 20
KN = "recurrent_scan__sliding_local_dilated__glu_gated_bilinear__prompt_kernel"
def make(src, dst, kB, rlo=0, rhi=32, mult=4, usemin=False):
    s = open(src).read()
    s = re.sub(r"; @launch grid=\(256,1,1\) block=\(512,1,1\) lds=163840", f"; @launch kernel={KN} grid=(256,1,1) block=(512,1,1) lds=163840\n; @launch kernel=k3_kernel grid=(1,1,1) block=(64,1,1) lds=0", s)
    L = []
    A = L.append
    A(""".globl k3_kernel
.p2align 8
.type k3_kernel,@function
k3_kernel:
    s_cmp_lg_u32 s2, 0
    s_cbranch_scc1 K3_END
    s_load_dwordx2 s[4:5], s[0:1], 72
    s_memrealtime s[10:11]
    s_waitcnt lgkmcnt(0)""")
    A(f"    v_lshlrev_b32 v1, 5, v0\n    v_add_u32 v1, {STAMP_OFF}, v1\n    v_mov_b32 v4, 0\n    v_mov_b32 v5, {0 if usemin else -1}")
    for r in range(32):
        A(f"    global_load_dword v2, v1, s[4:5]\n    global_load_dword v3, v1, s[4:5] offset:{4*kB}\n    s_waitcnt vmcnt(0)")
        A("    v_sub_u32 v2, s10, v2\n    v_max_u32 v4, v4, v2")
        if rlo <= r < rhi:
            A("    v_cmp_ne_u32 vcc, 0, v3\n    v_sub_u32 v3, s10, v3\n    s_nop 1")
            if usemin: A("    v_cndmask_b32 v3, 0, v3, vcc\n    v_max_u32 v5, v5, v3")
            else: A("    v_cndmask_b32 v3, -1, v3, vcc\n    v_min_u32 v5, v5, v3")
        A("    v_add_u32 v1, 2048, v1")
    A("    s_mov_b32 s6, 0\n    s_mov_b32 s7, %d" % (0 if usemin else -1))
    for l in range(64):
        A(f"    v_readlane_b32 s8, v4, {l}\n    v_readlane_b32 s9, v5, {l}\n    s_nop 3\n    s_max_u32 s6, s6, s8\n    {'s_max_u32' if usemin else 's_min_u32'} s7, s7, s9")
    A(f"""    s_sub_u32 s6, s6, s7
    s_min_u32 s6, s6, 6000
    s_mul_i32 s6, s6, {mult}
    s_add_u32 s6, s6, 4000
K3_SPIN:
    s_memrealtime s[12:13]
    s_waitcnt lgkmcnt(0)
    s_sub_u32 s8, s12, s10
    s_cmp_lt_u32 s8, s6
    s_cbranch_scc1 K3_SPIN
K3_END:
    s_endpgm
""")
    s = s.replace('.section .rodata,"a"', "\n".join(L) + '.section .rodata,"a"', 1)
    s += """.p2align 6
.amdhsa_kernel k3_kernel
  .amdhsa_next_free_vgpr 8
  .amdhsa_next_free_sgpr 16
  .amdhsa_accum_offset 8
  .amdhsa_group_segment_fixed_size 0
  .amdhsa_kernarg_size 80
  .amdhsa_user_sgpr_count 2
  .amdhsa_user_sgpr_kernarg_segment_ptr 1
  .amdhsa_system_sgpr_workgroup_id_x 1
.end_amdhsa_kernel
"""
    open(dst, "w").write(s)
src = sys.argv[1]
make(src, "q_base.s", 0, usemin=True)
make(src, "q_s0.s", 0)
make(src, "q_g5.s", 5, 0, 21)
make(src, "q_g3.s", 3, 0, 21)
make(src, "q_q3.s", 3, 21, 28)
make(src, "q_1.s", 1)
make(src, "q_4.s", 4)
make(src, "q_7.s", 7)
make(src, "q_q5.s", 5, 21, 32)
make(src, "q_g1min.s", 1, 0, 21, usemin=True)
make(src, "q_g5min.s", 5, 0, 21, usemin=True)
make(src, "q_2.s", 2, 0, 28)
```
